```python
import torch

def _softmax(x, axis=-1):
    return torch.softmax(x, dim=axis)
def _gelu(x):
    return torch.nn.functional.gelu(x, approximate="tanh")
def _silu(x):
    return torch.nn.functional.silu(x)
def _sigmoid(x):
    return torch.sigmoid(x)
def _layernorm(x, axis=-1, eps=1e-5):
    m = x.mean(dim=axis, keepdim=True)
    v = x.var(dim=axis, keepdim=True, unbiased=False)
    return (x - m) / torch.sqrt(v + eps)
def _scatter_add(tgt, idx, src, axis=0):
    return tgt.clone().index_add_(axis, idx, src)
def _segment_sum(src, seg, n):
    out = torch.zeros((n,) + src.shape[1:], dtype=src.dtype)
    return out.index_add_(0, seg, src)
def _pad(x, pw):
    flat = tuple(v for pair in reversed(pw) for v in pair)
    return torch.nn.functional.pad(x, flat)

kernel_name = 'sequential_preLN__softmax_full_mha__swiglu_ffn__prompt'

def setup_inputs():

    _w = (lambda a: (lambda t: t.to(torch.bfloat16) if t.is_floating_point() else t)(torch.as_tensor(a)))
    def _A_setup():
        B, S, D = 1, 2048, 512
        return {
            "x": _w((lambda *s: torch.randn(*s, dtype=torch.bfloat16) * 0.05)(B, S, D)),
            "wqkv": _w((lambda *s: torch.randn(*s, dtype=torch.bfloat16) * 0.05)(D, 3 * D)),
            "wo": _w((lambda *s: torch.randn(*s, dtype=torch.bfloat16) * 0.05)(D, D)),
        }
    _A_in = _A_setup()

    def _B_setup():
        B, S, D, F = 1, 2048, 512, 1376
        return {
            "x": _w((lambda *s: torch.randn(*s, dtype=torch.bfloat16) * 0.05)(B, S, D)),
            "w_gate": _w((lambda *s: torch.randn(*s, dtype=torch.bfloat16) * 0.05)(D, F)),
            "w_up": _w((lambda *s: torch.randn(*s, dtype=torch.bfloat16) * 0.05)(D, F)),
            "w_down": _w((lambda *s: torch.randn(*s, dtype=torch.bfloat16) * 0.05)(F, D)),
        }
    _B_in = _B_setup()

    return {
        "A_x": _A_in["x"],
        "A_wqkv": _A_in["wqkv"],
        "A_wo": _A_in["wo"],
        "B_x": _B_in["x"],
        "B_w_gate": _B_in["w_gate"],
        "B_w_up": _B_in["w_up"],
        "B_w_down": _B_in["w_down"],
    }

def reference(A_x, A_wqkv, A_wo, B_x, B_w_gate, B_w_up, B_w_down):
    def _A_ref(x, wqkv, wo):
        B, S, D = x.shape
        H = 32; Dh = D // H
        qkv = (lambda x, *d: x.permute(*d))((x @ wqkv).reshape(B, S, 3, H, Dh), 2, 0, 3, 1, 4)
        q, k, v = qkv[0], qkv[1], qkv[2]
        scale = Dh ** -0.5
        scores = torch.einsum("bhqd,bhkd->bhqk", q, k) * scale
        p = _softmax(scores, axis=-1)
        o = torch.einsum("bhqk,bhkd->bhqd", p, v)
        return (lambda x, *d: x.permute(*d))(o, 0, 2, 1, 3).reshape(B, S, D) @ wo

    def _B_ref(x, w_gate, w_up, w_down):
        g = _silu(x @ w_gate)
        u = x @ w_up
        return (g * u) @ w_down

    x = A_x
    h = x + _A_ref(_layernorm(x, axis=-1), A_wqkv, A_wo)
    h2 = h + _B_ref(_layernorm(h, axis=-1), B_w_gate, B_w_up, B_w_down)
    return h2
```

```python
import re

TRANS = ("v_exp_f32", "v_log_f32", "v_rcp_f32", "v_rsq_f32", "v_sqrt_f32", "v_sin_f32", "v_cos_f32")


def vr(n, c=1):
    return f"v{n}" if c == 1 else f"v[{n}:{n + c - 1}]"


def ar(n, c=1):
    return f"a{n}" if c == 1 else f"a[{n}:{n + c - 1}]"


def sr(n, c=1):
    return f"s{n}" if c == 1 else f"s[{n}:{n + c - 1}]"


class Regs:
    def __init__(self, lo, hi):
        self.lo, self.hi = lo, hi
        self.used = {}
        self.top = lo

    def alloc(self, name, count=1, align=1):
        assert name not in self.used, name
        if count > 1 and align == 1:
            align = 2
        n = self.lo
        while True:
            n = (n + align - 1) // align * align
            clash = [(b, c) for b, c in self.used.values() if b < n + count and n < b + c]
            if not clash:
                break
            n = max(b + c for b, c in clash)
        assert n + count <= self.hi, f"out of registers for {name}"
        self.used[name] = (n, count)
        self.top = max(self.top, n + count)
        return n

    def free(self, *names):
        for name in names:
            del self.used[name]


class Kernel:
    def __init__(self, name, block, lds, grid=256):
        self.name, self.block, self.lds, self.grid = name, block, lds, grid
        self.lines = []
        self.v = Regs(1, 256)
        self.s = Regs(3, 100)
        self.a = Regs(0, 256)
        self.vm = []
        self.uid = 0
        self.accum_offset = None

    def e(self, text):
        for t in text.split("\n"):
            t = t.strip()
            if t:
                self._check(t)
                self.lines.append("    " + t)

    def c(self, text):
        self.lines.append("    ; " + text)

    def lab(self, name):
        self.lines.append(f"{name}:")

    def L(self, stem):
        self.uid += 1
        return f"L_{self.name[:-7]}_{stem}_{self.uid}"

    def _check(self, t):
        m = re.search(r"offset:(-?\d+)", t)
        if m:
            off = int(m.group(1))
            if t.startswith("buffer_"):
                assert 0 <= off <= 4095, t
            elif t.startswith("ds_"):
                assert 0 <= off <= 65535, t
            elif t.startswith("global_"):
                assert -4096 <= off <= 4095, t

    def vmem(self, text, tag):
        self.e(text)
        self.vm.append(tag)

    def vm_after(self, tag):
        idx = max(i for i, t in enumerate(self.vm) if t == tag)
        return len(self.vm) - 1 - idx

    def wait_vm(self, tag, lgkm=None):
        n = self.vm_after(tag)
        assert n <= 63, (tag, n)
        self.e(f"s_waitcnt vmcnt({n})" + (f" lgkmcnt({lgkm})" if lgkm is not None else ""))

    def text(self):
        head = f".globl {self.name}\n.p2align 8\n.type {self.name},@function\n{self.name}:\n"
        return head + "\n".join(self.lines) + "\n"

    def descriptor(self):
        nv = self.v.top
        na = self.a.top
        acc = (nv + 3) // 4 * 4
        total = acc + na if na else nv
        assert total <= 512
        return (f".amdhsa_kernel {self.name}\n"
                f"  .amdhsa_next_free_vgpr {total}\n"
                f"  .amdhsa_next_free_sgpr {max(self.s.top, 16)}\n"
                f"  .amdhsa_accum_offset {acc}\n"
                f"  .amdhsa_group_segment_fixed_size 0\n"
                f"  .amdhsa_kernarg_size 80\n"
                f"  .amdhsa_user_sgpr_count 2\n"
                f"  .amdhsa_user_sgpr_kernarg_segment_ptr 1\n"
                f"  .amdhsa_system_sgpr_workgroup_id_x 1\n"
                f".end_amdhsa_kernel\n")


_REG = re.compile(r"\b([vas])(?:(\d+)|\[(\d+):(\d+)\])")


def regs_of(op):
    out = set()
    for cls, one, lo, hi in _REG.findall(op):
        if one:
            out.add((cls, int(one)))
        else:
            out.update((cls, i) for i in range(int(lo), int(hi) + 1))
    if re.search(r"\bvcc\b", op):
        out.update({("s", 106), ("s", 107)})
    if re.search(r"\bm0\b", op):
        out.add(("s", 124))
    if re.search(r"\bexec\b", op):
        out.update({("s", 126), ("s", 127)})
    return out


class Ins:
    def __init__(self, text):
        self.text = text
        t = text.split(";")[0].strip()
        self.op = t.split()[0]
        rest = t[len(self.op):].strip()
        self.ops = [x.strip() for x in re.split(r",(?![^\[]*\])", rest)] if rest else []
        op = self.op
        self.mfma = op.startswith("v_mfma")
        self.valu = op.startswith("v_") and not self.mfma
        self.trans = any(op.startswith(x) for x in TRANS)
        self.salu = op.startswith("s_")
        self.ds = op.startswith("ds_")
        self.vmem = op.startswith(("buffer_", "global_"))
        self.dpp = "_dpp" in op or "row_" in t or "quad_perm" in t
        self.perm = op.startswith("v_permlane")
        self.passes = 8 if "32x32x16" in op else (4 if "16x16x32" in op else 0)
        self.states = 1
        if op == "s_nop":
            self.states = int(self.ops[0]) + 1
        R = [regs_of(o) for o in self.ops]
        self.w, self.r = set(), set()
        self.srcc = set()
        self.store_data = set()
        if self.mfma:
            self.w = R[0]
            self.ab = R[1] | R[2]
            self.srcc = R[3]
            self.r = self.ab | self.srcc
        elif self.valu:
            if op.startswith("v_cmp"):
                self.w = R[0]
                self.r = set().union(*R[1:])
            elif self.perm:
                self.w = R[0] | R[1]
                self.r = R[0] | R[1]
            elif op.startswith(("v_add_co", "v_addc_co", "v_sub_co")):
                self.w = R[0] | R[1]
                self.r = set().union(*R[2:])
            else:
                self.w = R[0]
                self.r = set().union(*R[1:]) if len(R) > 1 else set()
                if op.startswith(("v_fmac", "v_dot2c", "v_pk_fmac")) or "UNUSED_PRESERVE" in t or self.dpp:
                    self.r |= R[0]
                if op.startswith("v_cndmask") and "_e32" not in op and len(R) == 3:
                    self.r |= {("s", 106), ("s", 107)}
        elif self.ds:
            if op.startswith(("ds_read", "ds_bpermute", "ds_swizzle")):
                self.w = R[0]
                self.r = set().union(*R[1:])
            else:
                self.r = set().union(*R)
        elif self.vmem:
            lds = bool(re.search(r"\blds\b", t))
            if "store" in op or ("atomic" in op and "sc0" not in t):
                self.r = set().union(*R)
                if op.endswith(("x3", "x4")):
                    self.store_data = R[0] if op.startswith("buffer_") else R[1]
            elif lds:
                self.r = set().union(*R) | {("s", 124)}
            elif op in ("buffer_wbl2", "buffer_inv"):
                pass
            else:
                self.w = R[0]
                self.r = set().union(*R[1:])
            self.lds = lds
        elif self.salu:
            if op.startswith(("s_cmp", "s_waitcnt", "s_barrier", "s_nop", "s_cbranch", "s_branch", "s_endpgm", "s_setprio", "s_sleep", "s_bitcmp")):
                self.r = set().union(*R) if R else set()
            else:
                self.w = R[0] if R else set()
                self.r = set().union(*R[1:]) if len(R) > 1 else set()
                if "saveexec" in op:
                    self.w |= {("s", 126), ("s", 127)}
                    self.r |= {("s", 126), ("s", 127)}


def need(p, c):
    n = 0
    pv = {x for x in p.w if x[0] in "va"}
    ps = {x for x in p.w if x[0] == "s"}
    if p.valu and pv:
        if c.mfma and pv & c.r:
            n = max(n, 2)
        if (c.perm or c.dpp) and pv & c.r:
            n = max(n, 2)
        if c.op.startswith(("v_readfirstlane", "v_readlane")) and pv & c.r:
            n = max(n, 1)
        if p.trans and c.valu and not c.trans and pv & c.r:
            n = max(n, 1)
    if p.op.startswith("v_dot2") and pv:
        if c.op == p.op:
            srcs = set().union(*[regs_of(o) for o in c.ops[1:3]])
            if pv & srcs:
                n = max(n, 3)
        elif pv & (c.r | c.w):
            n = max(n, 3)
    if p.valu and ps:
        if c.vmem and ps & c.r:
            n = max(n, 5)
        if c.valu and ps & c.r:
            n = max(n, 2)
        if c.mfma and ps & {("s", 126), ("s", 127)}:
            n = max(n, 4)
    if p.mfma:
        big = p.passes == 8
        if c.mfma:
            if p.w & c.ab:
                n = max(n, 12 if big else 8)
            if p.w & c.srcc and not (p.w == c.srcc and p.passes == c.passes):
                n = max(n, 10 if big else 6)
        elif (c.valu or c.ds or c.vmem) and p.w & (c.r | c.w):
            n = max(n, 12 if big else 8)
        if c.valu and p.srcc & c.w and not (p.w & c.w):
            n = max(n, 7 if big else 3)
    if p.salu and ("s", 124) in p.w and c.vmem and getattr(c, "lds", False):
        n = max(n, 1)
    if p.store_data and (c.valu or c.mfma) and p.store_data & c.w:
        n = max(n, 2)
    if p.store_data and (c.ds or c.vmem) and p.store_data & c.w:
        n = max(n, 1)
    return n


def check_hazards(text, name=""):
    ins, labels = [], {}
    for line in text.split("\n"):
        t = line.split(";")[0].strip()
        if not t or t.startswith("."):
            continue
        if t.endswith(":"):
            labels[t[:-1]] = len(ins)
            continue
        ins.append(Ins(t))
    preds = [[] for _ in ins]
    for i, x in enumerate(ins):
        if x.op in ("s_endpgm",):
            continue
        if x.op == "s_branch":
            preds[labels[x.ops[0]]].append(i)
            continue
        if x.op.startswith("s_cbranch"):
            tgt = labels[x.ops[0]]
            if tgt < len(ins):
                preds[tgt].append(i)
        if i + 1 < len(ins):
            preds[i + 1].append(i)
    problems = []
    for i, c in enumerate(ins):
        if c.salu and not c.op.startswith("s_mov") :
            pass
        stack = [(p, 0) for p in preds[i]]
        seen = {}
        while stack:
            p, dist = stack.pop()
            if dist >= 20 or seen.get(p, 99) <= dist:
                continue
            seen[p] = dist
            n = need(ins[p], c)
            if n > dist:
                problems.append(f"{name}: need {n} states, have {dist}: [{ins[p].text}] -> [{c.text}]")
            for q in preds[p]:
                stack.append((q, dist + ins[p].states))
    return sorted(set(problems))
```

```python
from asmlib import *
from layout import *


def entry(k, nwg, ptrs):
    k.end = k.L("end")
    stamp(k, 0)
    k.e(f"s_cmp_ge_u32 s2, {nwg}")
    k.e(f"s_cbranch_scc1 {k.end}")
    srd = {}
    for name, arg, nbytes in ptrs:
        srd[name] = k.s.alloc("srd_" + name, 4, 4)
        k.e(f"s_load_dwordx2 {sr(srd[name], 2)}, s[0:1], {arg}")
    k.lane = k.v.alloc("lane")
    k.sw = k.s.alloc("wave")
    t = k.v.alloc("t_entry")
    k.e(f"v_lshrrev_b32 {vr(t)}, 6, v0")
    k.e(f"v_and_b32 {vr(k.lane)}, 63, v0")
    k.e(f"v_readfirstlane_b32 {sr(k.sw)}, {vr(t)}")
    k.v.free("t_entry")
    for name, arg, nbytes in ptrs:
        k.e(f"s_mov_b32 {sr(srd[name] + 2)}, {nbytes}")
        k.e(f"s_mov_b32 {sr(srd[name] + 3)}, {SRD3}")
    k.e("s_waitcnt lgkmcnt(0)")
    k.srd = {n: sr(b, 4) for n, b in srd.items()}
    return k.srd


def stamp(k, idx):
    if not getattr(k, "stamps", False):
        return
    if not hasattr(k, "stamp_regs"):
        k.stamp_regs = {}
    b = k.s.alloc(f"stamp{idx}", 2, 2)
    k.stamp_regs[idx] = b
    k.e(f"s_memtime {sr(b, 2)}")
    if idx == 0:
        k.rt0 = k.s.alloc("rt0", 2, 2)
        k.e(f"s_memrealtime {sr(k.rt0, 2)}")


def finish(k):
    if getattr(k, "stamps", False):
        rt1 = k.s.alloc("rt1", 2, 2)
        last = k.s.alloc("tlast", 2, 2)
        k.e("s_waitcnt vmcnt(0)")
        k.e(f"s_memtime {sr(last, 2)}")
        k.e(f"s_memrealtime {sr(rt1, 2)}")
        k.e("s_waitcnt lgkmcnt(0)")
        base = (k.v.top + 3) // 4 * 4
        k.v.top = base + 10
        t0 = k.stamp_regs[0]
        k.e(f"v_mov_b32 {vr(base)}, {sr(k.rt0)}")
        k.e(f"v_mov_b32 {vr(base + 1)}, {sr(rt1)}")
        vals = [k.stamp_regs[i] for i in sorted(k.stamp_regs) if i > 0][:5] + [last]
        for i in range(6):
            if i < len(vals):
                k.e(f"s_sub_u32 {sr(vals[i])}, {sr(vals[i])}, {sr(t0)}")
                k.e(f"v_mov_b32 {vr(base + 2 + i)}, {sr(vals[i])}")
            else:
                k.e(f"v_mov_b32 {vr(base + 2 + i)}, 0")
        t = k.s.alloc("stamp_off")
        k.e(f"s_lshl_b32 {sr(t)}, s2, 4")
        k.e(f"s_add_u32 {sr(t)}, {sr(t)}, {sr(k.sw)}")
        k.e(f"s_lshl_b32 {sr(t)}, {sr(t)}, 5")
        k.e(f"s_add_u32 {sr(t)}, {sr(t)}, {STAMP + k.stamp_slot * 131072}")
        k.e(f"v_mov_b32 {vr(base + 8)}, 0")
        k.e("s_mov_b64 exec, 1")
        k.e(f"buffer_store_dwordx4 {vr(base, 4)}, {vr(base + 8)}, {k.srd['ws']}, {sr(t)} offen")
        k.e(f"buffer_store_dwordx4 {vr(base + 4, 4)}, {vr(base + 8)}, {k.srd['ws']}, {sr(t)} offen offset:16")
    k.lab(k.end)
    k.e("s_endpgm")


def half_sum(k, v, t1, t2):
    k.e(f"v_mov_b32 {vr(t1)}, {vr(v)}")
    k.e(f"v_mov_b32 {vr(t2)}, {vr(v)}")
    k.e("s_nop 1")
    k.e(f"v_permlane32_swap_b32 {vr(t1)}, {vr(t2)}")
    k.e(f"v_add_f32 {vr(v)}, {vr(t1)}, {vr(t2)}")


def half_max(k, v, t1, t2):
    k.e(f"v_mov_b32 {vr(t1)}, {vr(v)}")
    k.e(f"v_mov_b32 {vr(t2)}, {vr(v)}")
    k.e("s_nop 1")
    k.e(f"v_permlane32_swap_b32 {vr(t1)}, {vr(t2)}")
    k.e(f"v_max_f32 {vr(v)}, {vr(t1)}, {vr(t2)}")


def max32(k, vs, ts):
    for pat in ("quad_perm:[1,0,3,2]", "quad_perm:[2,3,0,1]", "row_half_mirror", "row_mirror"):
        k.e("s_nop 1")
        for v in vs:
            k.e(f"v_max_f32_dpp {vr(v)}, {vr(v)}, {vr(v)} {pat} row_mask:0xf bank_mask:0xf")
    for i, v in enumerate(vs):
        k.e(f"v_mov_b32 {vr(ts[2 * i])}, {vr(v)}")
        k.e(f"v_mov_b32 {vr(ts[2 * i + 1])}, {vr(v)}")
    k.e("s_nop 1")
    for i, v in enumerate(vs):
        k.e(f"v_permlane16_swap_b32 {vr(ts[2 * i])}, {vr(ts[2 * i + 1])}")
    for i, v in enumerate(vs):
        k.e(f"v_max_f32 {vr(v)}, {vr(ts[2 * i])}, {vr(ts[2 * i + 1])}")
```

```python
from asmlib import check_hazards


def emit(kernels, path, header=""):
    out = header
    for k in kernels:
        out += f"; @launch kernel={k.name} grid=({k.grid},1,1) block=({k.block},1,1) lds={k.lds}\n"
    out += '.amdgcn_target "amdgcn-amd-amdhsa--gfx950"\n.text\n'
    seen, uniq = set(), []
    for k in kernels:
        if k.name not in seen:
            seen.add(k.name)
            uniq.append(k)
    bad = []
    for k in uniq:
        txt = k.text()
        bad += check_hazards(txt, k.name)
        out += txt
    out += '.section .rodata,"a"\n'
    for k in uniq:
        out += ".p2align 6\n" + k.descriptor()
    open(path, "w").write(out)
    for b in bad:
        print("HAZARD", b)
    return not bad
```

```python
from common import *

LX, LW = 0, 65536
SLOT = 24576
LDS_BYTES = LW + 4 * SLOT
QSCALE = 0.25 * LOG2E


def build(stamps=False):
    k = Kernel("k1_qkv_kernel", 512, LDS_BYTES)
    k.stamps, k.stamp_slot = stamps, 0
    k.dbg_index = k.stamp_slot if DBG_STAMPS[0] else None
    entry(k, 256, [("ws", ARG_WS, WS_USED), ("x", ARG_X, X_BYTES), ("w", ARG_WQKV, WQKV_BYTES)])
    ws = k.srd["ws"]
    s = {n: k.s.alloc(n) for n in ("tb", "hg", "t", "t2", "xo", "wbase")}
    sg = [k.s.alloc(f"g{i}") for i in range(6)]
    sl = [k.s.alloc(f"l{i}") for i in range(6)]
    k.e(f"s_bfe_u32 {sr(s['tb'])}, s2, 0x20001")
    k.e(f"s_lshl_b32 {sr(s['tb'])}, {sr(s['tb'])}, 3")
    k.e(f"s_bfe_u32 {sr(s['t'])}, s2, 0x30003")
    k.e(f"s_add_u32 {sr(s['tb'])}, {sr(s['tb'])}, {sr(s['t'])}")
    k.e(f"s_and_b32 {sr(s['hg'])}, s2, 1")
    k.e(f"s_lshl_b32 {sr(s['hg'])}, {sr(s['hg'])}, 2")
    k.e(f"s_lshr_b32 {sr(s['t'])}, s2, 6")
    k.e(f"s_add_u32 {sr(s['hg'])}, {sr(s['hg'])}, {sr(s['t'])}")

    X = k.v.alloc("X", 32, 4)
    vx = k.v.alloc("vx")
    vw = k.v.alloc("vw")
    t = k.v.alloc("t", 8, 4)
    k.e(f"v_lshrrev_b32 {vr(t)}, 3, {vr(k.lane)}")
    k.e(f"v_and_b32 {vr(t + 1)}, 7, {vr(k.lane)}")
    k.e(f"v_lshlrev_b32 {vr(vx)}, 10, {vr(t)}")
    k.e(f"v_lshl_add_u32 {vr(vx)}, {vr(t + 1)}, 4, {vr(vx)}")
    k.e(f"s_lshl_b32 {sr(s['xo'])}, {sr(s['tb'])}, 16")
    k.e(f"s_lshl_b32 {sr(s['t'])}, {sr(k.sw)}, 13")
    k.e(f"s_add_u32 {sr(s['xo'])}, {sr(s['xo'])}, {sr(s['t'])}")
    for j in range(8):
        k.vmem(f"buffer_load_dwordx4 {vr(X + 4 * j, 4)}, {vr(vx)}, {k.srd['x']}, {sr(s['xo'])} offen offset:{j * 128}", "x")
    k.e(f"v_bfe_u32 {vr(t + 2)}, {vr(k.lane)}, 4, 1")
    k.e(f"v_lshlrev_b32 {vr(t + 2)}, 2, {vr(t + 2)}")
    k.e(f"v_xor_b32 {vr(t + 2)}, {vr(t + 2)}, {vr(t + 1)}")
    k.e(f"v_mul_u32_u24 {vr(vw)}, 3072, {vr(t)}")
    k.e(f"v_lshl_add_u32 {vr(vw)}, {vr(t + 2)}, 4, {vr(vw)}")
    k.e(f"s_lshl_b32 {sr(s['wbase'])}, {sr(s['hg'])}, 7")

    def piece_regs(n, gexpr_mul, i):
        k.e(f"s_lshr_b32 {sr(s['t2'])}, {sr(s['t'])}, 3")
        k.e(f"s_and_b32 {sr(sl[i])}, {sr(s['t'])}, 7")
        k.e(f"s_mul_i32 {sr(sg[i])}, {sr(sl[i])}, {8 * 3072}")
        k.e(f"s_lshl_b32 {sr(sl[i])}, {sr(s['t'])}, 10")
        k.e(f"s_add_u32 {sr(sl[i])}, {sr(sl[i])}, {LW}")
        k.e(f"s_lshl_b32 {sr(s['t2'])}, {sr(s['t2'])}, 10")
        k.e(f"s_add_u32 {sr(sg[i])}, {sr(sg[i])}, {sr(s['t2'])}")
        k.e(f"s_add_u32 {sr(sg[i])}, {sr(sg[i])}, {sr(s['wbase'])}")

    def w_piece(i, c, tag):
        k.e(f"s_add_u32 m0, {sr(sl[i])}, {(c & 3) * SLOT}")
        k.e(f"s_add_u32 {sr(s['t'])}, {sr(sg[i])}, {c * 64 * 3072}")
        k.vmem(f"buffer_load_dwordx4 {vr(vw)}, {k.srd['w']}, {sr(s['t'])} offen lds", tag)

    for i in range(3):
        k.e(f"s_mul_i32 {sr(s['t'])}, {sr(k.sw)}, 3")
        k.e(f"s_add_u32 {sr(s['t'])}, {sr(s['t'])}, {i}")
        piece_regs(3, 3, i)
    for c in range(4):
        for i in range(3):
            w_piece(i, c, f"w{c}")

    aX = k.v.alloc("aXw")
    k.e(f"s_lshr_b32 {sr(s['t'])}, {sr(k.sw)}, 2")
    k.e(f"s_lshl_b32 {sr(s['t'])}, {sr(s['t'])}, 15")
    k.e(f"s_and_b32 {sr(s['t2'])}, {sr(k.sw)}, 3")
    k.e(f"s_lshl_b32 {sr(s['t2'])}, {sr(s['t2'])}, 3")
    k.e(f"v_add_u32 {vr(t + 3)}, {sr(s['t2'])}, {vr(t)}")
    k.e(f"v_xor_b32 {vr(t + 3)}, {vr(t + 3)}, {vr(t + 1)}")
    k.e(f"v_lshlrev_b32 {vr(aX)}, 4, {vr(t + 3)}")
    k.e(f"v_lshrrev_b32 {vr(t + 3)}, 1, {vr(t + 1)}")
    k.e(f"v_lshl_add_u32 {vr(aX)}, {vr(t + 3)}, 10, {vr(aX)}")
    k.e(f"v_and_b32 {vr(t + 3)}, 1, {vr(t + 1)}")
    k.e(f"v_lshl_add_u32 {vr(aX)}, {vr(t + 3)}, 9, {vr(aX)}")
    k.e(f"v_add_u32 {vr(aX)}, {sr(s['t'])}, {vr(aX)}")
    if LX:
        k.e(f"v_add_u32 {vr(aX)}, {LX}, {vr(aX)}")
    ones = k.v.alloc("ones")
    k.e(f"v_mov_b32 {vr(ones)}, 0x3f803f80")
    sm, sq = t + 4, t + 5
    k.wait_vm("x")
    stamp(k, 1)
    acc = [t + 4, t + 5, t + 6, t + 7]
    for i in range(32):
        a, b = acc[(i & 1) * 2], acc[(i & 1) * 2 + 1]
        k.e(f"v_dot2_f32_bf16 {vr(a)}, {vr(X + i)}, {vr(ones)}, {vr(a) if i > 1 else 0}")
        k.e(f"v_dot2_f32_bf16 {vr(b)}, {vr(X + i)}, {vr(X + i)}, {vr(b) if i > 1 else 0}")
    k.e("s_nop 2")
    k.e(f"v_add_f32 {vr(sm)}, {vr(acc[0])}, {vr(acc[2])}")
    k.e(f"v_add_f32 {vr(sq)}, {vr(acc[1])}, {vr(acc[3])}")
    for pat in ("quad_perm:[1,0,3,2]", "quad_perm:[2,3,0,1]", "row_half_mirror"):
        k.e("s_nop 1")
        k.e(f"v_add_f32_dpp {vr(sm)}, {vr(sm)}, {vr(sm)} {pat} row_mask:0xf bank_mask:0xf")
        k.e(f"v_add_f32_dpp {vr(sq)}, {vr(sq)}, {vr(sq)} {pat} row_mask:0xf bank_mask:0xf")
    k.e(f"v_mul_f32 {vr(sm)}, {f32hex(1.0 / D)}, {vr(sm)}")
    k.e(f"v_mul_f32 {vr(sq)}, {f32hex(1.0 / D)}, {vr(sq)}")
    k.e(f"v_fma_f32 {vr(sq)}, -{vr(sm)}, {vr(sm)}, {vr(sq)}")
    k.e(f"v_max_f32 {vr(sq)}, 0, {vr(sq)}")
    k.e(f"v_add_f32 {vr(sq)}, {f32hex(1e-5)}, {vr(sq)}")
    k.e(f"v_rsq_f32 {vr(sq)}, {vr(sq)}")
    rs, nb = t + 6, t + 4
    k.e("s_nop 0")
    k.e(f"v_mov_b32 {vr(t + 6)}, {vr(sq)}")
    k.e(f"v_mov_b32 {vr(t + 7)}, {vr(sq)}")
    k.e(f"v_mul_f32 {vr(t + 4)}, -{vr(sm)}, {vr(t + 6)}")
    k.e(f"v_mov_b32 {vr(t + 5)}, {vr(t + 4)}")
    U = k.v.alloc("U", 8, 4)
    for j in range(8):
        for d in range(4):
            x = X + 4 * j + d
            k.e(f"v_lshlrev_b32 {vr(U + 2 * d)}, 16, {vr(x)}")
            k.e(f"v_and_b32 {vr(U + 2 * d + 1)}, 0xffff0000, {vr(x)}")
        for d in range(4):
            k.e(f"v_pk_fma_f32 {vr(U + 2 * d, 2)}, {vr(U + 2 * d, 2)}, {vr(rs, 2)}, {vr(nb, 2)}")
        for d in range(4):
            k.e(f"v_cvt_pk_bf16_f32 {vr(X + 4 * j + d)}, {vr(U + 2 * d)}, {vr(U + 2 * d + 1)}")
        k.e(f"ds_write_b128 {vr(aX)}, {vr(X + 4 * j, 4)} offset:{j * 4096}")
    stamp(k, 2)
    loader = k.L("loader")
    k.e(f"s_cmp_ge_u32 {sr(k.sw)}, 4")
    k.e(f"s_cbranch_scc1 {loader}")
    vm0 = list(k.vm)

    tt, hp = k.s.alloc("tt"), k.s.alloc("hp")
    k.e(f"s_and_b32 {sr(tt)}, {sr(k.sw)}, 1")
    k.e(f"s_lshr_b32 {sr(hp)}, {sr(k.sw)}, 1")
    aXr = k.v.alloc("aXr", 4)
    aW = k.v.alloc("aW", 2)
    u0, u1 = U, U + 1
    k.e(f"v_and_b32 {vr(u0)}, 31, {vr(k.lane)}")
    k.e(f"v_lshrrev_b32 {vr(u1)}, 5, {vr(k.lane)}")
    k.e(f"s_lshl_b32 {sr(s['t'])}, {sr(tt)}, 15")
    for q in range(4):
        k.e(f"v_or_b32 {vr(U + 2)}, {2 * q}, {vr(u1)}")
        k.e(f"v_xor_b32 {vr(U + 2)}, {vr(U + 2)}, {vr(u0)}")
        k.e(f"v_lshlrev_b32 {vr(U + 2)}, 4, {vr(U + 2)}")
        k.e(f"v_lshl_add_u32 {vr(U + 2)}, {vr(u1)}, 9, {vr(U + 2)}")
        k.e(f"v_add_u32 {vr(aXr + q)}, {sr(s['t'])}, {vr(U + 2)}")
        if LX:
            k.e(f"v_add_u32 {vr(aXr + q)}, {LX}, {vr(aXr + q)}")
    k.e(f"v_bfe_u32 {vr(U + 2)}, {vr(k.lane)}, 4, 1")
    k.e(f"s_lshl_b32 {sr(s['t'])}, {sr(hp)}, 1")
    k.e(f"v_or_b32 {vr(U + 2)}, {sr(s['t'])}, {vr(U + 2)}")
    k.e(f"v_bfe_u32 {vr(U + 3)}, {vr(k.lane)}, 3, 1")
    k.e(f"v_lshlrev_b32 {vr(U + 3)}, 1, {vr(U + 3)}")
    k.e(f"v_xor_b32 {vr(U + 2)}, {vr(U + 2)}, {vr(U + 3)}")
    k.e(f"v_lshlrev_b32 {vr(U + 2)}, 5, {vr(U + 2)}")
    k.e(f"v_lshl_add_u32 {vr(U + 2)}, {vr(u1)}, 10, {vr(U + 2)}")
    k.e(f"v_bfe_u32 {vr(U + 3)}, {vr(k.lane)}, 2, 2")
    k.e(f"v_lshl_add_u32 {vr(U + 2)}, {vr(U + 3)}, 7, {vr(U + 2)}")
    k.e(f"v_and_b32 {vr(U + 3)}, 3, {vr(k.lane)}")
    k.e(f"v_lshl_add_u32 {vr(U + 2)}, {vr(U + 3)}, 3, {vr(U + 2)}")
    k.e(f"v_add_u32 {vr(aW)}, {LW}, {vr(U + 2)}")
    k.e(f"v_add_u32 {vr(aW + 1)}, {LW + 2 * SLOT}, {vr(U + 2)}")
    AQ, AK, AV = k.v.alloc("AQ", 16, 4), k.v.alloc("AK", 16, 4), k.v.alloc("AV", 16, 4)
    for i in range(16):
        for b in (AQ, AK, AV):
            k.e(f"v_mov_b32 {vr(b + i)}, 0")
    FX = [k.v.alloc(f"FX{i}", 4, 4) for i in range(2)]
    FW = [k.v.alloc(f"FW{i}", 12, 4) for i in range(2)]

    def reads(c, ksl, buf):
        ks = 4 * c + ksl
        k.e(f"ds_read_b128 {vr(FX[buf], 4)}, {vr(aXr + (ks & 3))} offset:{ks * 1024}")
        for seg in range(3):
            for tr in range(2):
                off = (c & 1) * SLOT + seg * 8192 + ksl * 2048 + tr * 512
                k.e(f"ds_read_b64_tr_b16 {vr(FW[buf] + 4 * seg + 2 * tr, 2)}, {vr(aW + ((c & 3) >> 1))} offset:{off}")

    for c in range(8):
        if c < 4:
            k.wait_vm(f"w{c}", lgkm=0)
        k.e("s_barrier")
        if c == 0:
            stamp(k, 3)
        reads(c, 0, 0)
        for ksl in range(4):
            buf = ksl & 1
            if ksl < 3:
                reads(c, ksl + 1, 1 - buf)
                k.e("s_waitcnt lgkmcnt(7)")
            else:
                k.e("s_waitcnt lgkmcnt(0)")
            k.e(f"v_mfma_f32_32x32x16_bf16 {vr(AQ, 16)}, {vr(FW[buf], 4)}, {vr(FX[buf], 4)}, {vr(AQ, 16)}")
            k.e(f"v_mfma_f32_32x32x16_bf16 {vr(AK, 16)}, {vr(FW[buf] + 4, 4)}, {vr(FX[buf], 4)}, {vr(AK, 16)}")
            k.e(f"v_mfma_f32_32x32x16_bf16 {vr(AV, 16)}, {vr(FX[buf], 4)}, {vr(FW[buf] + 8, 4)}, {vr(AV, 16)}")
    stamp(k, 4)
    l16 = k.v.alloc("l16")
    k.e(f"v_lshlrev_b32 {vr(l16)}, 4, {vr(k.lane)}")
    head0, tile = k.s.alloc("head0"), k.s.alloc("tile")
    k.e(f"s_lshl_b32 {sr(head0)}, {sr(s['hg'])}, 2")
    k.e(f"s_lshl_b32 {sr(s['t'])}, {sr(hp)}, 1")
    k.e(f"s_add_u32 {sr(head0)}, {sr(head0)}, {sr(s['t'])}")
    k.e(f"s_lshl_b32 {sr(tile)}, {sr(s['tb'])}, 1")
    k.e(f"s_add_u32 {sr(tile)}, {sr(tile)}, {sr(tt)}")
    k.e(f"s_lshl_b32 {sr(s['t'])}, {sr(head0)}, 16")
    k.e(f"s_lshl_b32 {sr(s['t2'])}, {sr(tile)}, 10")
    k.e(f"s_add_u32 {sr(s['xo'])}, {sr(s['t'])}, {sr(s['t2'])}")
    k.e(f"s_mov_b32 {sr(s['wbase'])}, {f32hex(QSCALE)}")
    k.e("s_nop 4")
    P = X
    for i in range(16):
        k.e(f"v_mul_f32 {vr(AQ + i)}, {sr(s['wbase'])}, {vr(AQ + i)}")
    for i in range(8):
        k.e(f"v_cvt_pk_bf16_f32 {vr(P + i)}, {vr(AQ + 2 * i)}, {vr(AQ + 2 * i + 1)}")
    for h in range(2):
        k.e(f"s_add_u32 {sr(s['t'])}, {sr(s['xo'])}, {QF + h * 65536}")
        k.e(f"buffer_store_dwordx4 {vr(P + 4 * h, 4)}, {vr(l16)}, {ws}, {sr(s['t'])} offen")
    for i in range(8):
        k.e(f"v_cvt_pk_bf16_f32 {vr(P + 8 + i)}, {vr(AK + 2 * i)}, {vr(AK + 2 * i + 1)}")
    for h in range(2):
        k.e(f"s_add_u32 {sr(s['t'])}, {sr(s['xo'])}, {KF + h * 65536}")
        k.e(f"buffer_store_dwordx4 {vr(P + 8 + 4 * h, 4)}, {vr(l16)}, {ws}, {sr(s['t'])} offen")
    for i in range(8):
        k.e(f"v_cvt_pk_bf16_f32 {vr(P + 16 + i)}, {vr(AV + 2 * i)}, {vr(AV + 2 * i + 1)}")
    k.e(f"v_bfe_u32 {vr(U)}, {vr(k.lane)}, 4, 1")
    k.e(f"v_lshlrev_b32 {vr(U)}, 16, {vr(U)}")
    k.e(f"v_lshrrev_b32 {vr(U + 1)}, 5, {vr(k.lane)}")
    k.e(f"v_lshl_add_u32 {vr(U)}, {vr(U + 1)}, 8, {vr(U)}")
    k.e(f"v_and_b32 {vr(U + 1)}, 15, {vr(k.lane)}")
    k.e(f"v_lshl_add_u32 {vr(U)}, {vr(U + 1)}, 4, {vr(U)}")
    k.e(f"s_add_u32 {sr(s['t'])}, {sr(s['xo'])}, {VF}")
    for b in range(2):
        k.e(f"buffer_store_dwordx4 {vr(P + 16 + 4 * b, 4)}, {vr(U)}, {ws}, {sr(s['t'])} offen offset:{b * 512}")
    n0, n1 = t, t + 1
    k.e(f"v_mul_f32 {vr(n0)}, {vr(AK)}, {vr(AK)}")
    k.e(f"v_mul_f32 {vr(n1)}, {vr(AK + 8)}, {vr(AK + 8)}")
    for i in range(1, 8):
        k.e(f"v_fmac_f32 {vr(n0)}, {vr(AK + i)}, {vr(AK + i)}")
        k.e(f"v_fmac_f32 {vr(n1)}, {vr(AK + 8 + i)}, {vr(AK + 8 + i)}")
    k.e(f"v_mov_b32 {vr(t + 2)}, {vr(n0)}")
    k.e(f"v_mov_b32 {vr(t + 3)}, {vr(n1)}")
    k.e("s_nop 1")
    k.e(f"v_permlane32_swap_b32 {vr(n0)}, {vr(t + 2)}")
    k.e(f"v_permlane32_swap_b32 {vr(n1)}, {vr(t + 3)}")
    k.e(f"v_add_f32 {vr(n0)}, {vr(n0)}, {vr(t + 2)}")
    k.e(f"v_add_f32 {vr(n1)}, {vr(n1)}, {vr(t + 3)}")
    max32(k, [n0, n1], [t + 2, t + 3, t + 4, t + 5])
    k.e(f"s_lshl_b32 {sr(s['t'])}, {sr(head0)}, 8")
    k.e(f"s_lshl_b32 {sr(s['t2'])}, {sr(tile)}, 2")
    k.e(f"s_add_u32 {sr(s['t'])}, {sr(s['t'])}, {sr(s['t2'])}")
    k.e(f"s_add_u32 {sr(s['t'])}, {sr(s['t'])}, {KN}")
    k.e(f"v_mov_b32 {vr(t + 6)}, 0")
    k.e("s_mov_b64 exec, 1")
    k.e(f"buffer_store_dword {vr(n0)}, {vr(t + 6)}, {ws}, {sr(s['t'])} offen")
    k.e(f"buffer_store_dword {vr(n1)}, {vr(t + 6)}, {ws}, {sr(s['t'])} offen offset:256")
    k.e("s_mov_b64 exec, -1")
    done = k.L("done")
    k.e(f"s_branch {done}")

    k.lab(loader)
    k.vm = vm0
    for i in range(6):
        k.e(f"s_sub_u32 {sr(s['t'])}, {sr(k.sw)}, 4")
        k.e(f"s_mul_i32 {sr(s['t'])}, {sr(s['t'])}, 6")
        k.e(f"s_add_u32 {sr(s['t'])}, {sr(s['t'])}, {i}")
        piece_regs(6, 6, i)
    for c in range(8):
        k.wait_vm(f"w{c}", lgkm=0)
        k.e("s_barrier")
        if 1 <= c <= 4:
            for i in range(6):
                w_piece(i, c + 3, f"w{c + 3}")
    k.lab(done)
    finish(k)
    return k
```

```python
from common import *

LK, LV, LONES, LSIDE = 0, 65536, 131072, 135168
LDS_BYTES = LSIDE + 3 * 8192
BOUND_MAX = 50.0
EXP = set()


def side_params(k, R):
    s = R
    skip = k.L("noside")
    k.e(f"s_mov_b32 {sr(s['type'])}, 0")
    k.e(f"s_cmp_ge_u32 {sr(k.sw)}, 3")
    k.e(f"s_cbranch_scc1 {skip}")
    k.e(f"s_lshl_b32 {sr(s['u'])}, {sr(k.sw)}, 8")
    k.e(f"s_add_u32 {sr(s['u'])}, {sr(s['u'])}, s2")
    k.e(f"s_cmp_ge_u32 {sr(s['u'])}, 592")
    k.e(f"s_cbranch_scc1 {skip}")
    l_wd, l_gu = k.L("unit_wd"), k.L("unit_gu")
    k.e(f"s_cmp_ge_u32 {sr(s['u'])}, 240")
    k.e(f"s_cbranch_scc1 {l_gu}")
    k.e(f"s_cmp_ge_u32 {sr(s['u'])}, 64")
    k.e(f"s_cbranch_scc1 {l_wd}")
    k.e(f"s_mov_b32 {sr(s['type'])}, 1")
    k.e(f"s_and_b32 {sr(s['cb'])}, {sr(s['u'])}, 7")
    k.e(f"s_lshr_b32 {sr(s['kb'])}, {sr(s['u'])}, 3")
    k.e(f"s_lshl_b32 {sr(s['src'])}, {sr(s['kb'])}, 16")
    k.e(f"s_lshl_b32 {sr(s['t'])}, {sr(s['cb'])}, 7")
    k.e(f"s_add_u32 {sr(s['src'])}, {sr(s['src'])}, {sr(s['t'])}")
    k.e(f"s_mul_i32 {sr(s['dst'])}, {sr(s['cb'])}, {2 * 32 * 1024}")
    k.e(f"s_lshl_b32 {sr(s['t'])}, {sr(s['kb'])}, 12")
    k.e(f"s_add_u32 {sr(s['dst'])}, {sr(s['dst'])}, {sr(s['t'])}")
    k.e(f"s_add_u32 {sr(s['dst'])}, {sr(s['dst'])}, {WOF}")
    k.e(f"s_mov_b32 {sr(s['dstride'])}, {32 * 1024}")
    k.e(f"s_branch {skip}")
    k.lab(l_wd)
    k.e(f"s_mov_b32 {sr(s['type'])}, 2")
    k.e(f"s_sub_u32 {sr(s['u'])}, {sr(s['u'])}, 64")
    k.e(f"s_and_b32 {sr(s['cb'])}, {sr(s['u'])}, 7")
    k.e(f"s_lshr_b32 {sr(s['kb'])}, {sr(s['u'])}, 3")
    k.e(f"s_lshl_b32 {sr(s['src'])}, {sr(s['kb'])}, 16")
    k.e(f"s_lshl_b32 {sr(s['t'])}, {sr(s['cb'])}, 7")
    k.e(f"s_add_u32 {sr(s['src'])}, {sr(s['src'])}, {sr(s['t'])}")
    k.e(f"s_mul_i32 {sr(s['dst'])}, {sr(s['cb'])}, {2 * FBP * 1024}")
    k.e(f"s_lshl_b32 {sr(s['t'])}, {sr(s['kb'])}, 12")
    k.e(f"s_add_u32 {sr(s['dst'])}, {sr(s['dst'])}, {sr(s['t'])}")
    k.e(f"s_add_u32 {sr(s['dst'])}, {sr(s['dst'])}, {WDF}")
    k.e(f"s_mov_b32 {sr(s['dstride'])}, {FBP * 1024}")
    k.e(f"s_branch {skip}")
    k.lab(l_gu)
    k.e(f"s_mov_b32 {sr(s['type'])}, 3")
    k.e(f"s_sub_u32 {sr(s['u'])}, {sr(s['u'])}, 240")
    k.e(f"s_and_b32 {sr(s['kb'])}, {sr(s['u'])}, 15")
    k.e(f"s_lshr_b32 {sr(s['cb'])}, {sr(s['u'])}, 4")
    k.e(f"s_mul_i32 {sr(s['src'])}, {sr(s['kb'])}, {32 * 2 * F}")
    k.e(f"s_lshl_b32 {sr(s['t'])}, {sr(s['cb'])}, 7")
    k.e(f"s_add_u32 {sr(s['src'])}, {sr(s['src'])}, {sr(s['t'])}")
    k.e(f"s_mul_i32 {sr(s['dst'])}, {sr(s['cb'])}, {4 * 32 * 1024}")
    k.e(f"s_lshl_b32 {sr(s['t'])}, {sr(s['kb'])}, 11")
    k.e(f"s_add_u32 {sr(s['dst'])}, {sr(s['dst'])}, {sr(s['t'])}")
    k.e(f"s_add_u32 {sr(s['dst'])}, {sr(s['dst'])}, {WGUF}")
    k.lab(skip)


def side_issue(k, R, tmp):
    s = R
    done, l_gu, l_wd = k.L("sidei_done"), k.L("sidei_gu"), k.L("sidei_wd")
    k.e(f"s_cmp_eq_u32 {sr(s['type'])}, 0")
    k.e(f"s_cbranch_scc1 {done}")
    a, b = tmp, tmp + 1
    k.e(f"v_lshrrev_b32 {vr(a)}, 4, {vr(k.lane)}")
    k.e(f"v_and_b32 {vr(a)}, 1, {vr(a)}")
    k.e(f"v_lshlrev_b32 {vr(a)}, 2, {vr(a)}")
    k.e(f"v_and_b32 {vr(b)}, 7, {vr(k.lane)}")
    k.e(f"v_xor_b32 {vr(a)}, {vr(a)}, {vr(b)}")
    k.e(f"v_lshlrev_b32 {vr(a)}, 4, {vr(a)}")
    k.e(f"v_lshrrev_b32 {vr(b)}, 3, {vr(k.lane)}")
    k.e(f"s_lshl_b32 {sr(s['lds'])}, {sr(k.sw)}, 13")
    k.e(f"s_add_u32 {sr(s['lds'])}, {sr(s['lds'])}, {LSIDE}")
    k.e(f"s_cmp_eq_u32 {sr(s['type'])}, 3")
    k.e(f"s_cbranch_scc1 {l_gu}")
    k.e(f"v_lshlrev_b32 {vr(b)}, 10, {vr(b)}")
    k.e(f"v_add_u32 {vr(a)}, {vr(a)}, {vr(b)}")
    k.e(f"s_cmp_eq_u32 {sr(s['type'])}, 2")
    k.e(f"s_cbranch_scc1 {l_wd}")
    for srd, nxt in (("wo", done), ("wd", done)):
        if srd == "wd":
            k.lab(l_wd)
        for i in range(8):
            k.e(f"s_add_u32 m0, {sr(s['lds'])}, {i * 1024}")
            k.e(f"s_add_u32 {sr(s['t'])}, {sr(s['src'])}, {i * 8 * 1024}")
            k.e(f"buffer_load_dwordx4 {vr(a)}, {k.srd[srd]}, {sr(s['t'])} offen lds")
        k.e(f"s_branch {nxt}")
    k.lab(l_gu)
    k.e(f"v_mul_u32_u24 {vr(b)}, {2 * F}, {vr(b)}")
    k.e(f"v_add_u32 {vr(a)}, {vr(a)}, {vr(b)}")
    for i in range(8):
        k.e(f"s_add_u32 m0, {sr(s['lds'])}, {i * 1024}")
        k.e(f"s_add_u32 {sr(s['t'])}, {sr(s['src'])}, {(i & 3) * 8 * 2 * F}")
        k.e(f"buffer_load_dwordx4 {vr(a)}, {k.srd['wg' if i < 4 else 'wu']}, {sr(s['t'])} offen lds")
    k.lab(done)


def side_finish(k, R, tmp):
    s = R
    done, l_gu = k.L("sidef_done"), k.L("sidef_gu")
    k.e(f"s_cmp_eq_u32 {sr(s['type'])}, 0")
    k.e(f"s_cbranch_scc1 {done}")
    ad, t0, t1, data = tmp, tmp + 4, tmp + 5, tmp + 6
    lane16 = tmp + 38
    k.e(f"v_lshrrev_b32 {vr(t0)}, 5, {vr(k.lane)}")
    k.e(f"v_lshlrev_b32 {vr(t0)}, 9, {vr(t0)}")
    k.e(f"v_bfe_u32 {vr(t1)}, {vr(k.lane)}, 2, 2")
    k.e(f"v_lshlrev_b32 {vr(t1)}, 7, {vr(t1)}")
    k.e(f"v_add_u32 {vr(t0)}, {vr(t0)}, {vr(t1)}")
    k.e(f"v_and_b32 {vr(t1)}, 3, {vr(k.lane)}")
    k.e(f"v_lshlrev_b32 {vr(t1)}, 3, {vr(t1)}")
    k.e(f"v_add_u32 {vr(t0)}, {vr(t0)}, {vr(t1)}")
    k.e(f"v_add_u32 {vr(t0)}, {sr(s['lds'])}, {vr(t0)}")
    k.e(f"v_bfe_u32 {vr(t1)}, {vr(k.lane)}, 3, 1")
    k.e(f"v_lshlrev_b32 {vr(t1)}, 1, {vr(t1)}")
    k.e(f"v_lshlrev_b32 {vr(lane16)}, 4, {vr(k.lane)}")
    k.e(f"s_cmp_eq_u32 {sr(s['type'])}, 3")
    k.e(f"s_cbranch_scc1 {l_gu}")
    for tile in range(2):
        k.e(f"v_bfe_u32 {vr(ad + tile)}, {vr(k.lane)}, 4, 1")
        k.e(f"v_or_b32 {vr(ad + tile)}, {2 * tile}, {vr(ad + tile)}")
        k.e(f"v_xor_b32 {vr(ad + tile)}, {vr(ad + tile)}, {vr(t1)}")
        k.e(f"v_lshlrev_b32 {vr(ad + tile)}, 5, {vr(ad + tile)}")
        k.e(f"v_add_u32 {vr(ad + tile)}, {vr(ad + tile)}, {vr(t0)}")
    for tile in range(2):
        for ks in range(4):
            for t in range(2):
                d = data + 4 * (4 * tile + ks) + 2 * t
                k.e(f"ds_read_b64_tr_b16 {vr(d, 2)}, {vr(ad + tile)} offset:{(2 * ks + t) * 1024}")
    for tile in range(2):
        k.e(f"s_mul_i32 {sr(s['t'])}, {sr(s['dstride'])}, {tile}")
        k.e(f"s_add_u32 {sr(s['t'])}, {sr(s['t'])}, {sr(s['dst'])}")
        for ks in range(4):
            k.e(f"s_waitcnt lgkmcnt({min(15, 2 * (7 - (4 * tile + ks)))})")
            k.e(f"buffer_store_dwordx4 {vr(data + 4 * (4 * tile + ks), 4)}, {vr(lane16)}, {k.srd['ws']}, {sr(s['t'])} offen offset:{ks * 1024}")
    k.e(f"s_branch {done}")
    k.lab(l_gu)
    k.e(f"v_bfe_u32 {vr(ad)}, {vr(k.lane)}, 4, 1")
    k.e(f"v_lshlrev_b32 {vr(ad)}, 12, {vr(ad)}")
    k.e(f"v_add_u32 {vr(t0)}, {vr(t0)}, {vr(ad)}")
    for fbl in range(4):
        k.e(f"v_xor_b32 {vr(ad + fbl)}, {fbl}, {vr(t1)}")
        k.e(f"v_lshlrev_b32 {vr(ad + fbl)}, 5, {vr(ad + fbl)}")
        k.e(f"v_add_u32 {vr(ad + fbl)}, {vr(ad + fbl)}, {vr(t0)}")
    for fbl in range(4):
        for ks in range(2):
            for t in range(2):
                d = data + 4 * (2 * fbl + ks) + 2 * t
                k.e(f"ds_read_b64_tr_b16 {vr(d, 2)}, {vr(ad + fbl)} offset:{(2 * ks + t) * 1024}")
    for fbl in range(4):
        k.e(f"s_add_u32 {sr(s['t'])}, {sr(s['dst'])}, {fbl * 32 * 1024}")
        for ks in range(2):
            k.e(f"s_waitcnt lgkmcnt({min(15, 2 * (7 - (2 * fbl + ks)))})")
            k.e(f"buffer_store_dwordx4 {vr(data + 4 * (2 * fbl + ks), 4)}, {vr(lane16)}, {k.srd['ws']}, {sr(s['t'])} offen offset:{ks * 1024}")
    k.lab(done)


def step(k, r, ii, extra=None):
    p = ii & 1
    S0, S1 = r["S"][p], r["S"][1 - p]
    P0, P1 = r["P"], r["P"] + 4
    e = lambda i: k.e(f"v_exp_f32 {vr(S0 + i)}, {vr(S0 + i)}") if "noexp" not in EXP else k.e(f"v_lshlrev_b32 {vr(S0 + i)}, 0, {vr(S0 + i)}\nv_lshlrev_b32 {vr(S0 + i)}, 0, {vr(S0 + i)}")
    c = lambda i: k.e(f"v_cvt_pk_bf16_f32 {vr(r['P'] + i // 2)}, {vr(S0 + i)}, {vr(S0 + i + 1)}")
    for i in (0, 1, 2, 3):
        e(i)
    c(0); c(2)
    k.e("s_waitcnt lgkmcnt(2)")
    if "nos" not in EXP:
        k.e(f"v_mfma_f32_32x32x16_bf16 {vr(S1, 16)}, {vr(r['K'][1 - p], 4)}, {vr(r['Q'], 4)}, {vr(r['negM'], 16)}")
    k.e(f"ds_read_b128 {vr(r['K'][p], 4)}, {vr(r['aK'])} offset:{(ii + 2) * 1024}")
    for i in (4, 5, 6, 7):
        e(i)
    c(4); c(6)
    if extra:
        extra()
    e(8); e(9)
    k.e("s_waitcnt lgkmcnt(1)")
    if "nopv" not in EXP:
        k.e(f"v_mfma_f32_32x32x16_bf16 {vr(r['O'], 16)}, {vr(r['V'][p], 4)}, {vr(P0, 4)}, {vr(r['O'], 16)}")
    e(10); e(11)
    c(8); c(10)
    for i in (12, 13, 14, 15):
        e(i)
    c(12); c(14)
    blk = 2 * ((ii & 3) + 1)
    if (ii & 3) == 3:
        k.e(f"v_add_u32 {vr(r['aV'])}, {vr(r['aV'])}, {vr(r['sV'])}")
        blk = 0
    k.e(f"ds_read_b128 {vr(r['V'][1 - p], 4)}, {vr(r['aV'])} offset:{blk * 512}")
    k.e(f"ds_read_b128 {vr(r['V'][1 - p] + 4, 4)}, {vr(r['aV'])} offset:{(blk + 1) * 512}")
    if "nopv" not in EXP:
        k.e(f"v_mfma_f32_32x32x16_bf16 {vr(r['O'], 16)}, {vr(r['V'][p] + 4, 4)}, {vr(P1, 4)}, {vr(r['O'], 16)}")


def build(with_side=True, stamps=False, prio=True, sparse_ones=True):
    k = Kernel("k2_attn_kernel", 512, LDS_BYTES)
    k.stamps, k.stamp_slot = stamps, 1
    k.dbg_index = k.stamp_slot if DBG_STAMPS[0] else None
    ptrs = [("ws", ARG_WS, WS_USED)]
    if with_side:
        ptrs += [("wo", ARG_WO, WO_BYTES), ("wg", ARG_WG, WG_BYTES), ("wu", ARG_WU, WG_BYTES), ("wd", ARG_WD, WD_BYTES)]
    entry(k, 256, ptrs)
    ws = k.srd["ws"]
    s = {n: k.s.alloc(n) for n in ("head", "qt", "t", "kg", "vg", "it", "type", "u", "cb", "kb", "src", "dst", "dstride", "lds", "t2", "kraw", "w1k")}
    r = {"Q": k.v.alloc("Q", 4, 4), "negM": k.v.alloc("negM", 16, 4),
         "S": [k.v.alloc("S0", 16, 4), k.v.alloc("S1", 16, 4)], "P": k.v.alloc("P", 8, 4), "O": k.v.alloc("O", 16, 4),
         "K": [k.v.alloc("K0", 4, 4), k.v.alloc("K1", 4, 4)], "V": [k.v.alloc("V0", 8, 4), k.v.alloc("V1", 8, 4)],
         "aK": k.v.alloc("aK"), "aV": k.v.alloc("aV"), "sV": k.v.alloc("sV")}
    l16 = k.v.alloc("l16")
    tmp = k.v.alloc("tmp", 40, 4)
    k.e(f"s_and_b32 {sr(s['head'])}, s2, 7")
    k.e(f"s_lshl_b32 {sr(s['head'])}, {sr(s['head'])}, 2")
    k.e(f"s_bfe_u32 {sr(s['t'])}, s2, 0x20003")
    k.e(f"s_add_u32 {sr(s['head'])}, {sr(s['head'])}, {sr(s['t'])}")
    k.e(f"s_lshr_b32 {sr(s['qt'])}, s2, 5")
    k.e(f"s_lshl_b32 {sr(s['qt'])}, {sr(s['qt'])}, 3")
    k.e(f"s_add_u32 {sr(s['qt'])}, {sr(s['qt'])}, {sr(k.sw)}")
    k.e(f"v_lshlrev_b32 {vr(l16)}, 4, {vr(k.lane)}")
    k.e(f"s_lshl_b32 {sr(s['kg'])}, {sr(s['head'])}, 16")
    k.e(f"s_lshl_b32 {sr(s['t'])}, {sr(s['qt'])}, 10")
    k.e(f"s_add_u32 {sr(s['t'])}, {sr(s['t'])}, {sr(s['kg'])}")
    if QF:
        k.e(f"s_add_u32 {sr(s['t'])}, {sr(s['t'])}, {QF}")
    k.vmem(f"buffer_load_dwordx4 {vr(r['Q'], 4)}, {vr(l16)}, {ws}, {sr(s['t'])} offen", "q")
    k.e(f"v_lshlrev_b32 {vr(tmp)}, 2, {vr(k.lane)}")
    k.e(f"s_lshl_b32 {sr(s['t'])}, {sr(s['head'])}, 8")
    k.e(f"s_add_u32 {sr(s['t'])}, {sr(s['t'])}, {KN}")
    k.vmem(f"buffer_load_dword {vr(tmp + 1)}, {vr(tmp)}, {ws}, {sr(s['t'])} offen", "kn")
    k.e(f"s_add_u32 {sr(s['kraw'])}, {sr(s['kg'])}, {KF}")
    k.e(f"s_lshl_b32 {sr(s['t'])}, {sr(k.sw)}, 10")
    k.e(f"s_add_u32 {sr(s['kg'])}, {sr(s['kg'])}, {sr(s['t'])}")
    k.e(f"s_add_u32 {sr(s['vg'])}, {sr(s['kg'])}, {VF}")
    k.e(f"s_add_u32 {sr(s['kg'])}, {sr(s['kg'])}, {KF}")
    k.e(f"s_mov_b32 {sr(s['w1k'])}, {sr(s['t'])}")

    def kv_chunk(c, which):
        base, g = (LK, s['kg']) if which == "k" else (LV, s['vg'])
        k.e(f"s_add_u32 m0, {sr(s['w1k'])}, {base + c * 8192}")
        k.e(f"s_add_u32 {sr(s['t2'])}, {sr(g)}, {c * 8192}")
        k.vmem(f"buffer_load_dwordx4 {vr(l16)}, {ws}, {sr(s['t2'])} offen lds", f"{which}{c}")
    for c in range(2):
        kv_chunk(c, "k")
        kv_chunk(c, "v")
    lab = k.L("noones")
    k.e(f"s_cmp_ge_u32 {sr(k.sw)}, 4")
    k.e(f"s_cbranch_scc1 {lab}")
    if sparse_ones:
        k.e(f"v_and_b32 {vr(tmp + 2)}, 11, v0")
        k.e(f"v_cmp_eq_u32 vcc, 0, {vr(tmp + 2)}")
        k.e(f"v_mov_b32 {vr(tmp + 3)}, 0x3f803f80")
        k.e(f"v_mov_b32 {vr(tmp + 8)}, 0")
        for i in range(4):
            k.e(f"v_cndmask_b32 {vr(tmp + 4 + i)}, {vr(tmp + 8)}, {vr(tmp + 3)}, vcc")
    else:
        for i in range(4):
            k.e(f"v_mov_b32 {vr(tmp + 4 + i)}, 0x3f803f80")
    k.e(f"v_lshlrev_b32 {vr(tmp + 2)}, 4, v0")
    k.e(f"v_add_u32 {vr(tmp + 2)}, {LONES}, {vr(tmp + 2)}")
    k.e(f"ds_write_b128 {vr(tmp + 2)}, {vr(tmp + 4, 4)}")
    k.lab(lab)
    k.e(f"v_add_u32 {vr(r['aK'])}, {LK}, {vr(l16)}")
    k.e(f"v_and_b32 {vr(tmp + 2)}, 15, {vr(k.lane)}")
    k.e(f"v_lshlrev_b32 {vr(tmp + 2)}, 4, {vr(tmp + 2)}")
    k.e(f"v_lshrrev_b32 {vr(tmp + 3)}, 5, {vr(k.lane)}")
    k.e(f"v_lshlrev_b32 {vr(tmp + 3)}, 8, {vr(tmp + 3)}")
    k.e(f"v_add_u32 {vr(tmp + 3)}, {vr(tmp + 3)}, {vr(tmp + 2)}")
    k.e(f"v_add_u32 {vr(tmp + 3)}, {LV}, {vr(tmp + 3)}")
    k.e(f"v_add_u32 {vr(tmp + 2)}, {LONES}, {vr(tmp + 2)}")
    k.e(f"v_and_b32 {vr(tmp + 8)}, 16, {vr(k.lane)}")
    k.e(f"v_cmp_eq_u32 vcc, 0, {vr(tmp + 8)}")
    k.e(f"v_mov_b32 {vr(tmp + 9)}, 4096")
    k.e(f"v_mov_b32 {vr(tmp + 10)}, 0")
    k.e(f"v_cndmask_b32 {vr(r['aV'])}, {vr(tmp + 2)}, {vr(tmp + 3)}, vcc")
    k.e(f"v_cndmask_b32 {vr(r['sV'])}, {vr(tmp + 10)}, {vr(tmp + 9)}, vcc")
    for i in range(16):
        k.e(f"v_mov_b32 {vr(r['O'] + i)}, 0")
    if with_side:
        side_params(k, s)
    k.wait_vm("kn")
    qn, kn = tmp + 2, tmp + 1
    k.e(f"v_dot2_f32_bf16 {vr(qn)}, {vr(r['Q'])}, {vr(r['Q'])}, 0")
    for i in range(1, 4):
        k.e(f"v_dot2_f32_bf16 {vr(qn)}, {vr(r['Q'] + i)}, {vr(r['Q'] + i)}, {vr(qn)}")
    max32(k, [kn], [tmp + 4, tmp + 5])
    half_max(k, kn, tmp + 4, tmp + 5)
    half_sum(k, qn, tmp + 4, tmp + 5)
    k.e(f"v_mul_f32 {vr(qn)}, {vr(qn)}, {vr(kn)}")
    k.e(f"v_sqrt_f32 {vr(qn)}, {vr(qn)}")
    k.e(f"s_mov_b32 {sr(s['t2'])}, {f32hex(BOUND_MAX)}")
    k.e(f"v_mul_f32 {vr(qn)}, {f32hex(1.01)}, {vr(qn)}")
    k.e(f"v_cmp_nge_f32 vcc, {sr(s['t2'])}, {vr(qn)}")
    fast = k.L("fast")
    k.e("s_nop 4")
    k.e(f"s_cbranch_vccz {fast}")
    k.e(f"v_mov_b32 {vr(qn)}, 0xff800000")
    k.e(f"s_mov_b32 {sr(s['it'])}, 0")
    slow = k.L("slow")
    k.lab(slow)
    k.e(f"s_lshl_b32 {sr(s['t2'])}, {sr(s['it'])}, 10")
    k.e(f"s_add_u32 {sr(s['t2'])}, {sr(s['t2'])}, {sr(s['kraw'])}")
    k.e(f"buffer_load_dwordx4 {vr(r['K'][0], 4)}, {vr(l16)}, {ws}, {sr(s['t2'])} offen")
    k.e("s_waitcnt vmcnt(0)")
    k.e(f"v_mfma_f32_32x32x16_bf16 {vr(r['S'][0], 16)}, {vr(r['K'][0], 4)}, {vr(r['Q'], 4)}, 0")
    k.e("s_nop 11")
    for i in range(0, 16, 2):
        k.e(f"v_max3_f32 {vr(qn)}, {vr(r['S'][0] + i)}, {vr(r['S'][0] + i + 1)}, {vr(qn)}")
    k.e(f"s_add_u32 {sr(s['it'])}, {sr(s['it'])}, 1")
    k.e(f"s_cmp_lt_u32 {sr(s['it'])}, 64")
    k.e(f"s_cbranch_scc1 {slow}")
    half_max(k, qn, tmp + 4, tmp + 5)
    k.lab(fast)
    for i in range(16):
        k.e(f"v_sub_f32 {vr(r['negM'] + i)}, 0, {vr(qn)}")
    stamp(k, 1)
    k.wait_vm("v1", lgkm=0)
    k.e("s_barrier")
    stamp(k, 2)
    k.e(f"ds_read_b128 {vr(r['K'][0], 4)}, {vr(r['aK'])}")
    k.e(f"ds_read_b128 {vr(r['K'][1], 4)}, {vr(r['aK'])} offset:1024")
    k.e(f"ds_read_b128 {vr(r['V'][0], 4)}, {vr(r['aV'])}")
    k.e(f"ds_read_b128 {vr(r['V'][0] + 4, 4)}, {vr(r['aV'])} offset:512")
    k.e("s_waitcnt lgkmcnt(3)")
    k.e(f"v_mfma_f32_32x32x16_bf16 {vr(r['S'][0], 16)}, {vr(r['K'][0], 4)}, {vr(r['Q'], 4)}, {vr(r['negM'], 16)}")
    k.e("s_nop 11")
    for ii in range(8):
        if prio and ii % 2 == 0:
            k.e(f"s_setprio {3 - ii // 2}")
        def extra(ii=ii):
            if ii < 6:
                kv_chunk(2 + ii, "k")
                kv_chunk(2 + ii, "v")
        step(k, r, ii, extra)
    k.e(f"v_add_u32 {vr(r['aK'])}, 8192, {vr(r['aK'])}")
    k.e("s_waitcnt vmcnt(0)")
    k.e("s_barrier")
    if prio:
        k.e("s_setprio 3")
    if with_side:
        side_issue(k, s, tmp)
    k.e(f"s_mov_b32 {sr(s['it'])}, 1")
    loop = k.L("loop")
    k.lines.append(".p2align 6")
    k.lab(loop)
    for ii in range(8):
        step(k, r, ii)
    k.e(f"v_add_u32 {vr(r['aK'])}, 8192, {vr(r['aK'])}")
    k.e(f"s_add_u32 {sr(s['it'])}, {sr(s['it'])}, 1")
    if with_side:
        noside = k.L("nosidefin")
        k.e(f"s_cmp_lg_u32 {sr(s['it'])}, 3")
        k.e(f"s_cbranch_scc1 {noside}")
        k.e("s_waitcnt vmcnt(0)")
        side_finish(k, s, tmp)
        k.lab(noside)
    if prio:
        for it, pr in ((5, 2), (6, 1), (7, 0)):
            lb = k.L("prio")
            k.e(f"s_cmp_lg_u32 {sr(s['it'])}, {it}")
            k.e(f"s_cbranch_scc1 {lb}")
            k.e(f"s_setprio {pr}")
            k.lab(lb)
    k.e(f"s_cmp_lt_u32 {sr(s['it'])}, 8")
    k.e(f"s_cbranch_scc1 {loop}")
    stamp(k, 3)
    k.e("s_nop 9")
    k.e(f"s_lshl_b32 {sr(s['t'])}, {sr(s['qt'])}, 15")
    k.e(f"s_lshl_b32 {sr(s['t2'])}, {sr(s['head'])}, 10")
    k.e(f"s_add_u32 {sr(s['t'])}, {sr(s['t'])}, {sr(s['t2'])}")
    k.e(f"v_rcp_f32 {vr(r['P'])}, {vr(r['O'] + 8)}")
    k.e(f"s_add_u32 {sr(s['t'])}, {sr(s['t'])}, {OF}")
    for i in range(8):
        k.e(f"v_mul_f32 {vr(r['O'] + i)}, {vr(r['O'] + i)}, {vr(r['P'])}")
    for i in range(4):
        k.e(f"v_cvt_pk_bf16_f32 {vr(r['S'][0] + i)}, {vr(r['O'] + 2 * i)}, {vr(r['O'] + 2 * i + 1)}")
    k.e(f"buffer_store_dwordx4 {vr(r['S'][0], 4)}, {vr(l16)}, {ws}, {sr(s['t'])} offen")
    finish(k)
    return k
```

```python
from common import *

CH = 8
SLOT = 4 * CH * 1024


def build(which, stamps=False):
    k3 = which == 3
    nsteps = 32 if k3 else 86
    nslots = 4 if k3 else 5
    nchunks = (nsteps + CH - 1) // CH
    LXR = 4 * SLOT
    lds = 4 * SLOT + 8192 if k3 else 5 * SLOT
    k = Kernel("k3_wo_kernel" if k3 else "k5_down_kernel", 512, lds)
    k.stamps, k.stamp_slot = stamps, (2 if k3 else 4)
    k.dbg_index = k.stamp_slot if DBG_STAMPS[0] else None
    ptrs = [("ws", ARG_WS, WS_USED)] + ([("x", ARG_X, X_BYTES)] if k3 else [("out", ARG_OUT, OUT_BYTES)])
    entry(k, 256, ptrs)
    ws = k.srd["ws"]
    s = {n: k.s.alloc(n) for n in ("tb", "fb", "t", "t2", "g", "l")}
    k.e(f"s_and_b32 {sr(s['tb'])}, s2, 7")
    k.e(f"s_lshl_b32 {sr(s['tb'])}, {sr(s['tb'])}, 2")
    k.e(f"s_bfe_u32 {sr(s['t'])}, s2, 0x20003")
    k.e(f"s_add_u32 {sr(s['tb'])}, {sr(s['tb'])}, {sr(s['t'])}")
    k.e(f"s_lshr_b32 {sr(s['fb'])}, s2, 5")
    l16 = k.v.alloc("l16")
    k.e(f"v_lshlrev_b32 {vr(l16)}, 4, {vr(k.lane)}")
    loader = k.L("loader")
    k.e(f"s_cmp_ge_u32 {sr(k.sw)}, 4")
    k.e(f"s_cbranch_scc1 {loader}")

    ft, tt = k.s.alloc("ft"), k.s.alloc("tt")
    k.e(f"s_and_b32 {sr(ft)}, {sr(k.sw)}, 1")
    k.e(f"s_lshr_b32 {sr(tt)}, {sr(k.sw)}, 1")
    tile = k.s.alloc("tile")
    ct = k.s.alloc("ct")
    k.e(f"s_lshl_b32 {sr(tile)}, {sr(s['tb'])}, 1")
    k.e(f"s_add_u32 {sr(tile)}, {sr(tile)}, {sr(tt)}")
    k.e(f"s_lshl_b32 {sr(ct)}, {sr(s['fb'])}, 1")
    k.e(f"s_add_u32 {sr(ct)}, {sr(ct)}, {sr(ft)}")
    R = k.v.alloc("R", 8, 4)
    if not k3:
        k.e(f"s_lshl_b32 {sr(s['t'])}, {sr(tile)}, 15")
        k.e(f"s_lshl_b32 {sr(s['t2'])}, {sr(ct)}, 11")
        k.e(f"s_add_u32 {sr(s['t'])}, {sr(s['t'])}, {sr(s['t2'])}")
        k.e(f"s_add_u32 {sr(s['t'])}, {sr(s['t'])}, {HF}")
        for b in range(2):
            k.e(f"buffer_load_dwordx4 {vr(R + 4 * b, 4)}, {vr(l16)}, {ws}, {sr(s['t'])} offen offset:{b * 1024}")
    aA, aB = k.v.alloc("aA", 3), k.v.alloc("aB", 3)
    k.e(f"s_lshl_b32 {sr(s['t'])}, {sr(ft)}, 13")
    k.e(f"s_lshl_b32 {sr(s['t2'])}, {sr(tt)}, 13")
    k.e(f"s_add_u32 {sr(s['t2'])}, {sr(s['t2'])}, {2 * CH * 1024}")
    for i in range(3):
        k.e(f"v_add_u32 {vr(aA + i)}, {sr(s['t'])}, {vr(l16)}")
        k.e(f"v_add_u32 {vr(aB + i)}, {sr(s['t2'])}, {vr(l16)}")
        if i:
            k.e(f"v_add_u32 {vr(aA + i)}, {i * 2 * SLOT}, {vr(aA + i)}")
            k.e(f"v_add_u32 {vr(aB + i)}, {i * 2 * SLOT}, {vr(aB + i)}")
    ACC = k.v.alloc("ACC", 16, 4)
    for i in range(16):
        k.e(f"v_mov_b32 {vr(ACC + i)}, 0")
    NB = 4
    FA = [k.v.alloc(f"FA{i}", 4, 4) for i in range(NB)]
    FB = [k.v.alloc(f"FB{i}", 4, 4) for i in range(NB)]

    def reads(n):
        c, ksl = divmod(n, CH)
        slot = c % nslots
        off = (slot & 1) * SLOT + ksl * 1024
        k.e(f"ds_read_b128 {vr(FA[n % NB], 4)}, {vr(aA + (slot >> 1))} offset:{off}")
        k.e(f"ds_read_b128 {vr(FB[n % NB], 4)}, {vr(aB + (slot >> 1))} offset:{off}")

    AHEAD = 3
    issued = 0
    k.e("s_barrier")
    stamp(k, 1)
    for n in range(nsteps):
        c = n // CH
        last_ok = min(nsteps, (c + 1) * CH)
        boundary = (n + 1 == last_ok) and last_ok < nsteps
        while issued < min(n + 1 + AHEAD, last_ok):
            reads(issued)
            issued += 1
        if boundary:
            k.e("s_waitcnt lgkmcnt(0)")
            k.e("s_barrier")
            nxt = min(nsteps, last_ok + CH)
            while issued < min(n + 1 + AHEAD, nxt):
                reads(issued)
                issued += 1
        else:
            k.e(f"s_waitcnt lgkmcnt({2 * (issued - n - 1)})")
        k.e(f"v_mfma_f32_32x32x16_bf16 {vr(ACC, 16)}, {vr(FA[n % NB], 4)}, {vr(FB[n % NB], 4)}, {vr(ACC, 16)}")
    stamp(k, 2)
    T = k.v.alloc("T", 24, 4)
    if k3:
        k.e("s_barrier")
        i_, hh = T, T + 1
        k.e(f"v_and_b32 {vr(i_)}, 31, {vr(k.lane)}")
        k.e(f"v_lshrrev_b32 {vr(hh)}, 5, {vr(k.lane)}")
        k.e(f"v_bfe_u32 {vr(T + 2)}, {vr(k.lane)}, 1, 3")
        k.e(f"v_lshlrev_b32 {vr(T + 3)}, 7, {vr(i_)}")
        k.e(f"v_lshl_add_u32 {vr(T + 3)}, {vr(hh)}, 3, {vr(T + 3)}")
        k.e(f"s_lshl_b32 {sr(s['t'])}, {sr(tt)}, 12")
        k.e(f"s_add_u32 {sr(s['t'])}, {sr(s['t'])}, {LXR}")
        k.e(f"v_add_u32 {vr(T + 3)}, {sr(s['t'])}, {vr(T + 3)}")
        k.e(f"s_lshl_b32 {sr(s['t2'])}, {sr(ft)}, 2")
        for q in range(4):
            k.e(f"v_xor_b32 {vr(T + 4)}, {sr(s['t2'])}, {vr(T + 2)}")
            k.e(f"v_xor_b32 {vr(T + 4)}, {q}, {vr(T + 4)}")
            k.e(f"v_lshl_add_u32 {vr(T + 4)}, {vr(T + 4)}, 4, {vr(T + 3)}")
            k.e(f"ds_read_b64 {vr(R + 2 * q, 2)}, {vr(T + 4)}")
        k.e("s_waitcnt lgkmcnt(0)")
    else:
        k.e("s_waitcnt vmcnt(0)")
        k.e("s_nop 9")
    for r in range(8):
        k.e(f"v_lshlrev_b32 {vr(T + 4)}, 16, {vr(R + r)}")
        k.e(f"v_and_b32 {vr(T + 5)}, 0xffff0000, {vr(R + r)}")
        k.e(f"v_add_f32 {vr(ACC + 2 * r)}, {vr(ACC + 2 * r)}, {vr(T + 4)}")
        k.e(f"v_add_f32 {vr(ACC + 2 * r + 1)}, {vr(ACC + 2 * r + 1)}, {vr(T + 5)}")
    P = T + 8
    for r in range(8):
        k.e(f"v_cvt_pk_bf16_f32 {vr(P + r)}, {vr(ACC + 2 * r)}, {vr(ACC + 2 * r + 1)}")
    if k3:
        k.e(f"s_lshl_b32 {sr(s['t'])}, {sr(tile)}, 15")
        k.e(f"s_lshl_b32 {sr(s['t2'])}, {sr(ct)}, 11")
        k.e(f"s_add_u32 {sr(s['t'])}, {sr(s['t'])}, {sr(s['t2'])}")
        k.e(f"s_add_u32 {sr(s['t'])}, {sr(s['t'])}, {HF}")
        for b in range(2):
            k.e(f"buffer_store_dwordx4 {vr(P + 4 * b, 4)}, {vr(l16)}, {ws}, {sr(s['t'])} offen offset:{b * 1024}")
        sm, sq = T, T + 1
        k.e(f"v_add_f32 {vr(sm)}, {vr(ACC)}, {vr(ACC + 1)}")
        k.e(f"v_mul_f32 {vr(sq)}, {vr(ACC)}, {vr(ACC)}")
        k.e(f"v_fmac_f32 {vr(sq)}, {vr(ACC + 1)}, {vr(ACC + 1)}")
        for i in range(2, 16):
            k.e(f"v_add_f32 {vr(sm)}, {vr(sm)}, {vr(ACC + i)}")
            k.e(f"v_fmac_f32 {vr(sq)}, {vr(ACC + i)}, {vr(ACC + i)}")
        k.e("s_nop 1")
        k.e(f"v_permlane32_swap_b32 {vr(sm)}, {vr(sq)}")
        k.e(f"v_add_f32 {vr(sm)}, {vr(sm)}, {vr(sq)}")
        k.e(f"s_lshl_b32 {sr(s['t'])}, {sr(tile)}, 12")
        k.e(f"s_lshr_b32 {sr(s['t2'])}, {sr(ct)}, 2")
        k.e(f"s_lshl_b32 {sr(s['t2'])}, {sr(s['t2'])}, 10")
        k.e(f"s_add_u32 {sr(s['t'])}, {sr(s['t'])}, {sr(s['t2'])}")
        k.e(f"s_and_b32 {sr(s['t2'])}, {sr(ct)}, 3")
        k.e(f"s_lshl_b32 {sr(s['t2'])}, {sr(s['t2'])}, 2")
        k.e(f"s_add_u32 {sr(s['t'])}, {sr(s['t'])}, {sr(s['t2'])}")
        k.e(f"s_add_u32 {sr(s['t'])}, {sr(s['t'])}, {ST}")
        k.e(f"buffer_store_dword {vr(sm)}, {vr(l16)}, {ws}, {sr(s['t'])} offen")
    else:
        k.e("s_nop 1")
        for b in range(2):
            k.e(f"v_permlane32_swap_b32 {vr(P + 4 * b)}, {vr(P + 4 * b + 2)}")
            k.e(f"v_permlane32_swap_b32 {vr(P + 4 * b + 1)}, {vr(P + 4 * b + 3)}")
        k.e(f"v_and_b32 {vr(T)}, 31, {vr(k.lane)}")
        k.e(f"v_lshlrev_b32 {vr(T)}, 10, {vr(T)}")
        k.e(f"v_lshrrev_b32 {vr(T + 1)}, 5, {vr(k.lane)}")
        k.e(f"v_lshl_add_u32 {vr(T)}, {vr(T + 1)}, 4, {vr(T)}")
        k.e(f"s_lshl_b32 {sr(s['t'])}, {sr(tile)}, 15")
        k.e(f"s_lshl_b32 {sr(s['t2'])}, {sr(ct)}, 6")
        k.e(f"s_add_u32 {sr(s['t'])}, {sr(s['t'])}, {sr(s['t2'])}")
        for b in range(2):
            k.e(f"buffer_store_dwordx4 {vr(P + 4 * b, 4)}, {vr(T)}, {k.srd['out']}, {sr(s['t'])} offen offset:{b * 32}")
    done = k.L("done")
    k.e(f"s_branch {done}")

    k.lab(loader)
    k.vm = []
    lB, lgo = k.L("ldB"), k.L("ldgo")
    a_steps = 32 if k3 else FBP
    k.e(f"s_cmp_ge_u32 {sr(k.sw)}, 6")
    k.e(f"s_cbranch_scc1 {lB}")
    k.e(f"s_lshl_b32 {sr(s['t'])}, {sr(s['fb'])}, 1")
    k.e(f"s_add_u32 {sr(s['t'])}, {sr(s['t'])}, {sr(k.sw)}")
    k.e(f"s_sub_u32 {sr(s['t'])}, {sr(s['t'])}, 4")
    k.e(f"s_mul_i32 {sr(s['g'])}, {sr(s['t'])}, {a_steps * 1024}")
    k.e(f"s_add_u32 {sr(s['g'])}, {sr(s['g'])}, {WOF if k3 else WDF}")
    k.e(f"s_branch {lgo}")
    k.lab(lB)
    k.e(f"s_lshl_b32 {sr(s['t'])}, {sr(s['tb'])}, 1")
    k.e(f"s_add_u32 {sr(s['t'])}, {sr(s['t'])}, {sr(k.sw)}")
    k.e(f"s_sub_u32 {sr(s['t'])}, {sr(s['t'])}, 6")
    k.e(f"s_mul_i32 {sr(s['g'])}, {sr(s['t'])}, {a_steps * 1024}")
    k.e(f"s_add_u32 {sr(s['g'])}, {sr(s['g'])}, {OF if k3 else ACT}")
    k.lab(lgo)
    k.e(f"s_sub_u32 {sr(s['l'])}, {sr(k.sw)}, 4")
    k.e(f"s_lshl_b32 {sr(s['l'])}, {sr(s['l'])}, 13")

    def chunk(c):
        n0, n1 = c * CH, min(nsteps, (c + 1) * CH)
        for n in range(n0, n1, 4):
            k.e(f"s_add_u32 m0, {sr(s['l'])}, {(c % nslots) * SLOT + (n - n0) * 1024}")
            k.e(f"s_add_u32 {sr(s['t'])}, {sr(s['g'])}, {n * 1024}")
            for i in range(min(4, n1 - n)):
                k.vmem(f"buffer_load_dwordx4 {vr(l16)}, {ws}, {sr(s['t'])} offen offset:{i * 1024} lds", f"c{c}")

    def xtile():
        a, b = k.v.alloc("xa"), k.v.alloc("xb")
        for pi in range(2):
            k.e(f"v_lshrrev_b32 {vr(a)}, 3, {vr(k.lane)}")
            k.e(f"v_lshrrev_b32 {vr(b)}, 4, {vr(k.lane)}")
            k.e(f"v_or_b32 {vr(b)}, {4 * pi}, {vr(b)}")
            k.e(f"v_xor_b32 {vr(b)}, {vr(b)}, {vr(k.lane)}")
            k.e(f"v_and_b32 {vr(b)}, 7, {vr(b)}")
            k.e(f"v_lshlrev_b32 {vr(a)}, 10, {vr(a)}")
            k.e(f"v_lshl_add_u32 {vr(a)}, {vr(b)}, 4, {vr(a)}")
            k.e(f"s_sub_u32 {sr(s['t'])}, {sr(k.sw)}, 4")
            k.e(f"s_lshl_b32 {sr(s['t'])}, {sr(s['t'])}, 1")
            k.e(f"s_add_u32 {sr(s['t'])}, {sr(s['t'])}, {pi}")
            k.e(f"s_lshl_b32 {sr(s['t2'])}, {sr(s['t'])}, 10")
            k.e(f"s_add_u32 m0, {sr(s['t2'])}, {LXR}")
            k.e(f"s_lshl_b32 {sr(s['t'])}, {sr(s['t'])}, 13")
            k.e(f"s_lshl_b32 {sr(s['t2'])}, {sr(s['tb'])}, 16")
            k.e(f"s_add_u32 {sr(s['t'])}, {sr(s['t'])}, {sr(s['t2'])}")
            k.e(f"s_lshl_b32 {sr(s['t2'])}, {sr(s['fb'])}, 7")
            k.e(f"s_add_u32 {sr(s['t'])}, {sr(s['t'])}, {sr(s['t2'])}")
            k.vmem(f"buffer_load_dwordx4 {vr(a)}, {k.srd['x']}, {sr(s['t'])} offen lds", "x")

    for c in range(min(nslots, nchunks)):
        chunk(c)
    if k3:
        xtile()
    for c in range(nchunks):
        k.wait_vm(f"c{c}")
        k.e("s_barrier")
        if c >= 1 and c - 1 + nslots < nchunks:
            chunk(c - 1 + nslots)
    if k3:
        k.e("s_waitcnt vmcnt(0)")
        k.e("s_barrier")
    k.lab(done)
    finish(k)
    return k
```

```python
from common import *

LW = 0
LCS = 3 * 32 * 1024
LDS_BYTES = LCS + 512
CH = 8


def build(stamps=False):
    k = Kernel("k4_ffn_kernel", 512, LDS_BYTES)
    k.stamps, k.stamp_slot = stamps, 3
    k.dbg_index = k.stamp_slot if DBG_STAMPS[0] else None
    entry(k, 256, [("ws", ARG_WS, WS_USED)])
    ws = k.srd["ws"]
    s = {n: k.s.alloc(n) for n in ("mt", "nt", "t", "t2", "tile", "hg", "fb0")}
    sg = [k.s.alloc(f"g{i}") for i in range(3)]
    sl = [k.s.alloc(f"l{i}") for i in range(3)]
    k.e(f"s_and_b32 {sr(s['mt'])}, s2, 1")
    k.e(f"s_lshl_b32 {sr(s['mt'])}, {sr(s['mt'])}, 2")
    k.e(f"s_bfe_u32 {sr(s['t'])}, s2, 0x20003")
    k.e(f"s_add_u32 {sr(s['mt'])}, {sr(s['mt'])}, {sr(s['t'])}")
    k.e(f"s_bfe_u32 {sr(s['nt'])}, s2, 0x20001")
    k.e(f"s_lshl_b32 {sr(s['nt'])}, {sr(s['nt'])}, 3")
    k.e(f"s_lshr_b32 {sr(s['t'])}, s2, 5")
    k.e(f"s_add_u32 {sr(s['nt'])}, {sr(s['nt'])}, {sr(s['t'])}")
    k.e(f"s_cmp_ge_u32 {sr(s['nt'])}, 29")
    k.e(f"s_cbranch_scc1 {k.end}")
    k.e(f"s_mul_i32 {sr(s['fb0'])}, {sr(s['nt'])}, 3")
    k.e(f"s_lshl_b32 {sr(s['tile'])}, {sr(s['mt'])}, 3")
    k.e(f"s_add_u32 {sr(s['tile'])}, {sr(s['tile'])}, {sr(k.sw)}")
    l16 = k.v.alloc("l16")
    k.e(f"v_lshlrev_b32 {vr(l16)}, 4, {vr(k.lane)}")
    for i in range(3):
        k.e(f"s_mul_i32 {sr(s['t'])}, {sr(k.sw)}, 3")
        k.e(f"s_add_u32 {sr(s['t'])}, {sr(s['t'])}, {i}")
        k.e(f"s_lshr_b32 {sr(s['t2'])}, {sr(s['t'])}, 3")
        k.e(f"s_and_b32 {sr(s['t'])}, {sr(s['t'])}, 7")
        k.e(f"s_lshl_b32 {sr(s['t'])}, {sr(s['t'])}, 10")
        k.e(f"s_lshl_b32 {sr(sl[i])}, {sr(s['t2'])}, 15")
        k.e(f"s_add_u32 {sr(sl[i])}, {sr(sl[i])}, {sr(s['t'])}")
        k.e(f"s_lshl_b32 {sr(sg[i])}, {sr(s['fb0'])}, 15")
        k.e(f"s_add_u32 {sr(sg[i])}, {sr(sg[i])}, {sr(sl[i])}")
        k.e(f"s_add_u32 {sr(sg[i])}, {sr(sg[i])}, {WGUF}")
    k.e(f"s_lshl_b32 {sr(s['hg'])}, {sr(s['tile'])}, 15")
    k.e(f"s_add_u32 {sr(s['hg'])}, {sr(s['hg'])}, {HF}")
    HB = k.v.alloc("HB", 128, 4)
    FWB = k.v.alloc("FWB", 24, 4)
    SS = FWB

    def w_piece(c, i):
        k.e(f"s_add_u32 m0, {sr(sl[i])}, {LW + c * CH * 1024}")
        k.e(f"s_add_u32 {sr(s['t'])}, {sr(sg[i])}, {c * CH * 1024}")
        k.vmem(f"buffer_load_dwordx4 {vr(l16)}, {ws}, {sr(s['t'])} offen lds", f"w{c}")

    def h_load(n):
        if n % 4 == 0:
            k.e(f"s_add_u32 {sr(s['t2'])}, {sr(s['hg'])}, {n * 1024}")
        k.vmem(f"buffer_load_dwordx4 {vr(HB + 4 * n, 4)}, {vr(l16)}, {ws}, {sr(s['t2'])} offen offset:{(n % 4) * 1024}", f"h{n}")

    for i in range(3):
        w_piece(0, i)
    for n in range(4):
        h_load(n)
    k.e(f"s_lshl_b32 {sr(s['t'])}, {sr(s['tile'])}, 12")
    k.e(f"s_add_u32 {sr(s['t'])}, {sr(s['t'])}, {ST}")
    for g in range(4):
        k.vmem(f"buffer_load_dwordx4 {vr(SS + 4 * g, 4)}, {vr(l16)}, {ws}, {sr(s['t'])} offen offset:{g * 1024}", "st")
    for i in range(3):
        w_piece(1, i)
    for n in range(4, 8):
        h_load(n)
    T = k.v.alloc("T", 16, 4)
    k.e(f"v_mov_b32 {vr(T)}, 0")
    k.e(f"v_lshlrev_b32 {vr(T + 1)}, 2, {vr(k.lane)}")
    k.e(f"v_add_u32 {vr(T + 1)}, {LCS}, {vr(T + 1)}")
    lz = k.L("nozero")
    k.e(f"s_cmp_ge_u32 {sr(k.sw)}, 2")
    k.e(f"s_cbranch_scc1 {lz}")
    k.e(f"s_lshl_b32 {sr(s['t'])}, {sr(k.sw)}, 8")
    k.e(f"v_add_u32 {vr(T + 2)}, {sr(s['t'])}, {vr(T + 1)}")
    k.e(f"ds_write_b32 {vr(T + 2)}, {vr(T)}")
    k.lab(lz)
    aW = k.v.alloc("aW", 2)
    k.e(f"v_add_u32 {vr(aW)}, {LW}, {vr(l16)}" if LW else f"v_mov_b32 {vr(aW)}, {vr(l16)}")
    k.e(f"v_add_u32 {vr(aW + 1)}, {LW + 65536}, {vr(l16)}")
    ACC = [k.v.alloc(f"ACC{t}", 16, 4) for t in range(3)]
    for t in range(3):
        for i in range(16):
            k.e(f"v_mov_b32 {vr(ACC[t] + i)}, 0")
    CS = k.v.alloc("CS", 3)
    ones = k.v.alloc("ones")
    k.e(f"v_mov_b32 {vr(ones)}, 0x3f803f80")
    for t in range(3):
        k.e(f"v_mov_b32 {vr(CS + t)}, 0")
    FW = [FWB, FWB + 12]

    def reads(n):
        for t in range(3):
            off = t * 32768 + n * 1024
            k.e(f"ds_read_b128 {vr(FW[n & 1] + 4 * t, 4)}, {vr(aW + (off >> 16))} offset:{off & 65535}")

    RS, MU = k.v.alloc("RS"), k.v.alloc("MU")
    MF = k.v.alloc("MF", 4, 4)

    def stats():
        k.wait_vm("st")
        for i in range(1, 16):
            k.e(f"v_add_f32 {vr(SS)}, {vr(SS)}, {vr(SS + i)}")
        k.e(f"v_mov_b32 {vr(T + 4)}, {vr(SS)}")
        k.e("s_nop 1")
        k.e(f"v_permlane32_swap_b32 {vr(SS)}, {vr(T + 4)}")
        k.e(f"v_mul_f32 {vr(MU)}, {f32hex(1.0 / D)}, {vr(SS)}")
        k.e(f"v_mul_f32 {vr(RS)}, {f32hex(1.0 / D)}, {vr(T + 4)}")
        k.e(f"v_fma_f32 {vr(RS)}, -{vr(MU)}, {vr(MU)}, {vr(RS)}")
        k.e(f"v_max_f32 {vr(RS)}, 0, {vr(RS)}")
        k.e(f"v_add_f32 {vr(RS)}, {f32hex(1e-5)}, {vr(RS)}")
        k.e(f"v_rsq_f32 {vr(RS)}, {vr(RS)}")
        k.e(f"v_sub_f32 {vr(T + 4)}, 0, {vr(MU)}")
        k.e(f"v_cvt_pk_bf16_f32 {vr(T + 5)}, {vr(T + 4)}, {vr(T + 4)}")
        k.e(f"v_and_b32 {vr(T + 6)}, 0xffff0000, {vr(T + 5)}")
        k.e(f"v_sub_f32 {vr(T + 6)}, {vr(T + 4)}, {vr(T + 6)}")
        k.e(f"v_mov_b32 {vr(T + 7)}, 0")
        k.e(f"v_cvt_pk_bf16_f32 {vr(T + 6)}, {vr(T + 6)}, {vr(T + 7)}")
        k.e(f"v_cmp_gt_u32 vcc, 32, {vr(k.lane)}")
        k.e(f"v_mov_b32 {vr(MF + 2)}, 0")
        k.e(f"v_mov_b32 {vr(MF + 3)}, 0")
        k.e(f"v_cndmask_b32 {vr(MF)}, {vr(T + 7)}, {vr(T + 5)}, vcc")
        k.e(f"v_cndmask_b32 {vr(MF + 1)}, {vr(T + 7)}, {vr(T + 6)}, vcc")

    later = []
    for n in range(32):
        item = []
        if n + 8 < 32:
            item.append(("h", n + 8))
        c = n // CH + 2
        if c < 4 and (n % CH) < 3:
            item.append(("w", c, n % CH))
        later.append(item)

    stats()
    k.wait_vm("w0", lgkm=0)
    k.e("s_barrier")
    stamp(k, 1)
    reads(0)
    for n in range(32):
        boundary = (n % CH == CH - 1) and n < 31
        if boundary:
            k.wait_vm(f"w{n // CH + 1}", lgkm=0)
            k.e("s_barrier")
            reads(n + 1)
        elif n < 31:
            reads(n + 1)
        for it in later[n]:
            if it[0] == "h":
                h_load(it[1])
            else:
                w_piece(it[1], it[2])
        k.wait_vm(f"h{n}", lgkm=(None if boundary else (3 if n < 31 else 0)))
        for t in range(3):
            k.e(f"v_mfma_f32_32x32x16_bf16 {vr(ACC[t], 16)}, {vr(FW[n & 1] + 4 * t, 4)}, {vr(HB + 4 * n, 4)}, {vr(ACC[t], 16)}")
        lb = k.L("nocs")
        k.e(f"s_cmp_lg_u32 {sr(k.sw)}, {n >> 2}")
        k.e(f"s_cbranch_scc1 {lb}")
        for d in range(4):
            for t in range(3):
                k.e(f"v_dot2_f32_bf16 {vr(CS + t)}, {vr(FW[n & 1] + 4 * t + d)}, {vr(ones)}, {vr(CS + t)}")
        k.lab(lb)
    stamp(k, 2)
    k.e(f"v_and_b32 {vr(T)}, 31, {vr(k.lane)}")
    k.e(f"v_lshlrev_b32 {vr(T)}, 2, {vr(T)}")
    k.e(f"v_add_u32 {vr(T)}, {LCS}, {vr(T)}")
    for t in range(3):
        k.e(f"ds_add_f32 {vr(T)}, {vr(CS + t)} offset:{t * 128}")
    k.e("s_waitcnt lgkmcnt(0)")
    k.e("s_barrier")
    for t in range(3):
        k.e(f"ds_read_b32 {vr(CS + t)}, {vr(T)} offset:{t * 128}")
    k.e(f"v_cmp_gt_u32 vcc, 32, {vr(k.lane)}")
    k.e(f"v_mov_b32 {vr(T + 7)}, 0")
    k.e("s_waitcnt lgkmcnt(0)")
    for t in range(3):
        f = FW[0] + 4 * t
        k.e(f"v_cvt_pk_bf16_f32 {vr(T + 5)}, {vr(CS + t)}, {vr(CS + t)}")
        k.e(f"v_and_b32 {vr(T + 6)}, 0xffff0000, {vr(T + 5)}")
        k.e(f"v_sub_f32 {vr(T + 6)}, {vr(CS + t)}, {vr(T + 6)}")
        k.e(f"v_cvt_pk_bf16_f32 {vr(T + 6)}, {vr(CS + t)}, {vr(T + 6)}")
        k.e(f"v_and_b32 {vr(T + 5)}, 0xffff, {vr(T + 5)}")
        k.e(f"v_cndmask_b32 {vr(f)}, {vr(T + 7)}, {vr(T + 6)}, vcc")
        k.e(f"v_cndmask_b32 {vr(f + 1)}, {vr(T + 7)}, {vr(T + 5)}, vcc")
        k.e(f"v_mov_b32 {vr(f + 2)}, 0")
        k.e(f"v_mov_b32 {vr(f + 3)}, 0")
    k.e("s_nop 1")
    for t in range(3):
        k.e(f"v_mfma_f32_32x32x16_bf16 {vr(ACC[t], 16)}, {vr(FW[0] + 4 * t, 4)}, {vr(MF, 4)}, {vr(ACC[t], 16)}")
    NR, R2 = T + 8, T + 9
    k.e(f"v_mul_f32 {vr(NR)}, {f32hex(-LOG2E)}, {vr(RS)}")
    k.e(f"v_mul_f32 {vr(R2)}, {vr(RS)}, {vr(RS)}")
    k.e(f"s_mul_i32 {sr(s['t'])}, {sr(s['tile'])}, {FBP * 1024}")
    k.e(f"s_lshl_b32 {sr(s['t2'])}, {sr(s['fb0'])}, 10")
    k.e(f"s_add_u32 {sr(s['t'])}, {sr(s['t'])}, {sr(s['t2'])}")
    k.e(f"s_add_u32 {sr(s['t'])}, {sr(s['t'])}, {ACT}")
    k.e("s_nop 5")
    E = HB
    for t in range(3):
        A = ACC[t]
        e = E + 16 * t
        for j in range(8):
            k.e(f"v_mul_f32 {vr(e + j)}, {vr(A + j)}, {vr(NR)}")
        for j in range(8):
            k.e(f"v_exp_f32 {vr(e + j)}, {vr(e + j)}")
        for j in range(8):
            k.e(f"v_mul_f32 {vr(A + j)}, {vr(A + j)}, {vr(A + 8 + j)}")
        for j in range(8):
            k.e(f"v_add_f32 {vr(e + j)}, 1.0, {vr(e + j)}")
        for j in range(8):
            k.e(f"v_rcp_f32 {vr(e + j)}, {vr(e + j)}")
        for j in range(8):
            k.e(f"v_mul_f32 {vr(A + j)}, {vr(A + j)}, {vr(R2)}")
        for j in range(8):
            k.e(f"v_mul_f32 {vr(A + j)}, {vr(A + j)}, {vr(e + j)}")
        for j in range(4):
            k.e(f"v_cvt_pk_bf16_f32 {vr(e + 8 + j)}, {vr(A + 2 * j)}, {vr(A + 2 * j + 1)}")
        k.e(f"buffer_store_dwordx4 {vr(e + 8, 4)}, {vr(l16)}, {ws}, {sr(s['t'])} offen offset:{t * 1024}")
    finish(k)
    return k
```

```python
S, D, H, DH, F = 2048, 512, 32, 16, 1376
MB = 1 << 20
QF = 0 * MB
KF = 2 * MB
VF = 4 * MB
OF = 6 * MB
HF = 8 * MB
ACT = 10 * MB
FBP = 88
WOF = 16 * MB
WDF = WOF + MB // 2
WGUF = 18 * MB
KN = 21 * MB
ST = 21 * MB + MB // 4
CSP = 21 * MB + MB // 2
STAMP = 22 * MB
WS_USED = 24 * MB

X_BYTES = S * D * 2
WQKV_BYTES = D * 3 * D * 2
WO_BYTES = D * D * 2
WG_BYTES = D * F * 2
WD_BYTES = F * D * 2
OUT_BYTES = S * D * 2

ARG_X, ARG_WQKV, ARG_WO, ARG_BX, ARG_WG, ARG_WU, ARG_WD, ARG_OUT, ARG_DBG, ARG_WS = (8 * i for i in range(10))
SRD3 = "0x00020000"
LOG2E = 1.4426950408889634


def f32hex(x):
    import struct
    return "0x%08x" % struct.unpack("<I", struct.pack("<f", x))[0]
```

```python
import sys
import k1_qkv, k2_attn, k35_gemm, k4_ffn, emit

HEADER = """; Pre-LN transformer block (softmax MHA, 32 heads x 16; SwiGLU FFN), S=2048, D=512, F=1376, bf16.
"""

def kernels(stamps):
    return [k1_qkv.build(stamps=stamps), k2_attn.build(stamps=stamps), k35_gemm.build(3, stamps=stamps),
            k4_ffn.build(stamps=stamps), k35_gemm.build(5, stamps=stamps)]

if __name__ == "__main__":
    ok = emit.emit(kernels(True), "all_s.s", HEADER)
    ok &= emit.emit(kernels(False), "all.s", HEADER)
    print("hazard-free" if ok else "HAZARDS")
```

```python
import build_all, emit
from asmlib import Kernel
from common import *

def empty(name="k0_empty_kernel", grid=256, block=512, lds=0):
    k = Kernel(name, block, lds, grid)
    k.e("s_nop 0")
    k.e("s_endpgm")
    return k

ks = build_all.kernels(False)
e = empty()
emit.emit(ks, "v_a.s", build_all.HEADER)
emit.emit(ks + [e, e, e, e], "v_b.s", build_all.HEADER)
emit.emit([e, e, e, e] + ks, "v_c.s", build_all.HEADER)
emit.emit([e] + ks, "v_d.s", build_all.HEADER)
```

```python
from asmlib import *
from layout import *

DBG_STAMPS = [False]


def entry(k, nwg, ptrs):
    k.end = k.L("end")
    stamp(k, 0)
    if getattr(k, "dbg_index", None) is not None:
        k.dbg_rt0 = k.s.alloc("dbg_rt0", 2, 2)
        k.e(f"s_memrealtime {sr(k.dbg_rt0, 2)}")
    k.e(f"s_cmp_ge_u32 s2, {nwg}")
    k.e(f"s_cbranch_scc1 {k.end}")
    srd = {}
    for name, arg, nbytes in ptrs:
        srd[name] = k.s.alloc("srd_" + name, 4, 4)
        k.e(f"s_load_dwordx2 {sr(srd[name], 2)}, s[0:1], {arg}")
    k.lane = k.v.alloc("lane")
    k.sw = k.s.alloc("wave")
    t = k.v.alloc("t_entry")
    k.e(f"v_lshrrev_b32 {vr(t)}, 6, v0")
    k.e(f"v_and_b32 {vr(k.lane)}, 63, v0")
    k.e(f"v_readfirstlane_b32 {sr(k.sw)}, {vr(t)}")
    k.v.free("t_entry")
    for name, arg, nbytes in ptrs:
        k.e(f"s_mov_b32 {sr(srd[name] + 2)}, {nbytes}")
        k.e(f"s_mov_b32 {sr(srd[name] + 3)}, {SRD3}")
    k.e("s_waitcnt lgkmcnt(0)")
    k.srd = {n: sr(b, 4) for n, b in srd.items()}
    return k.srd


def stamp(k, idx):
    if not getattr(k, "stamps", False):
        return
    if not hasattr(k, "stamp_regs"):
        k.stamp_regs = {}
    b = k.s.alloc(f"stamp{idx}", 2, 2)
    k.stamp_regs[idx] = b
    k.e(f"s_memtime {sr(b, 2)}")
    if idx == 0:
        k.rt0 = k.s.alloc("rt0", 2, 2)
        k.e(f"s_memrealtime {sr(k.rt0, 2)}")


def finish(k):
    if getattr(k, "dbg_index", None) is not None:
        i = k.dbg_index
        skip = k.L("nodbg")
        a = k.s.alloc("dbg_ptr", 4, 4)
        r1 = k.s.alloc("dbg_rt", 2, 2)
        k.e(f"s_cmp_lg_u32 {sr(k.sw)}, 0")
        k.e(f"s_cbranch_scc1 {skip}")
        k.e(f"s_load_dwordx2 {sr(a, 2)}, s[0:1], {ARG_DBG}")
        k.e("s_waitcnt vmcnt(0)")
        k.e(f"s_memrealtime {sr(r1, 2)}")
        k.e("s_waitcnt lgkmcnt(0)")
        k.e(f"s_sub_u32 {sr(a)}, {sr(a)}, {512 * i}")
        k.e(f"s_subb_u32 {sr(a + 1)}, {sr(a + 1)}, 0")
        k.e(f"s_mov_b32 {sr(a + 2)}, 64")
        k.e(f"s_mov_b32 {sr(a + 3)}, {SRD3}")
        base = (k.v.top + 3) // 4 * 4
        k.v.top = base + 4
        k.e(f"v_mov_b32 {vr(base)}, {sr(k.dbg_rt0)}")
        k.e(f"v_mov_b32 {vr(base + 1)}, {sr(r1)}")
        k.e(f"v_mov_b32 {vr(base + 2)}, {12 * i}")
        k.e("s_mov_b64 exec, 1")
        l2 = k.L("dbg255")
        k.e("s_cmp_lg_u32 s2, 0")
        k.e(f"s_cbranch_scc1 {l2}")
        k.e(f"buffer_store_dwordx2 {vr(base, 2)}, {vr(base + 2)}, {sr(a, 4)}, 0 offen")
        k.e(f"s_branch {skip}")
        k.lab(l2)
        k.e("s_cmp_lg_u32 s2, 100")
        k.e(f"s_cbranch_scc1 {skip}")
        k.e(f"buffer_store_dword {vr(base + 1)}, {vr(base + 2)}, {sr(a, 4)}, 0 offen offset:8")
        k.lab(skip)
    if getattr(k, "stamps", False):
        rt1 = k.s.alloc("rt1", 2, 2)
        last = k.s.alloc("tlast", 2, 2)
        k.e("s_waitcnt vmcnt(0)")
        k.e(f"s_memtime {sr(last, 2)}")
        k.e(f"s_memrealtime {sr(rt1, 2)}")
        k.e("s_waitcnt lgkmcnt(0)")
        base = (k.v.top + 3) // 4 * 4
        k.v.top = base + 10
        t0 = k.stamp_regs[0]
        k.e(f"v_mov_b32 {vr(base)}, {sr(k.rt0)}")
        k.e(f"v_mov_b32 {vr(base + 1)}, {sr(rt1)}")
        vals = [k.stamp_regs[i] for i in sorted(k.stamp_regs) if i > 0][:5] + [last]
        for i in range(6):
            if i < len(vals):
                k.e(f"s_sub_u32 {sr(vals[i])}, {sr(vals[i])}, {sr(t0)}")
                k.e(f"v_mov_b32 {vr(base + 2 + i)}, {sr(vals[i])}")
            else:
                k.e(f"v_mov_b32 {vr(base + 2 + i)}, 0")
        t = k.s.alloc("stamp_off")
        k.e(f"s_lshl_b32 {sr(t)}, s2, 4")
        k.e(f"s_add_u32 {sr(t)}, {sr(t)}, {sr(k.sw)}")
        k.e(f"s_lshl_b32 {sr(t)}, {sr(t)}, 5")
        k.e(f"s_add_u32 {sr(t)}, {sr(t)}, {STAMP + k.stamp_slot * 131072}")
        k.e(f"v_mov_b32 {vr(base + 8)}, 0")
        k.e("s_mov_b64 exec, 1")
        k.e(f"buffer_store_dwordx4 {vr(base, 4)}, {vr(base + 8)}, {k.srd['ws']}, {sr(t)} offen")
        k.e(f"buffer_store_dwordx4 {vr(base + 4, 4)}, {vr(base + 8)}, {k.srd['ws']}, {sr(t)} offen offset:16")
    k.lab(k.end)
    k.e("s_endpgm")


def half_sum(k, v, t1, t2):
    k.e(f"v_mov_b32 {vr(t1)}, {vr(v)}")
    k.e(f"v_mov_b32 {vr(t2)}, {vr(v)}")
    k.e("s_nop 1")
    k.e(f"v_permlane32_swap_b32 {vr(t1)}, {vr(t2)}")
    k.e(f"v_add_f32 {vr(v)}, {vr(t1)}, {vr(t2)}")


def half_max(k, v, t1, t2):
    k.e(f"v_mov_b32 {vr(t1)}, {vr(v)}")
    k.e(f"v_mov_b32 {vr(t2)}, {vr(v)}")
    k.e("s_nop 1")
    k.e(f"v_permlane32_swap_b32 {vr(t1)}, {vr(t2)}")
    k.e(f"v_max_f32 {vr(v)}, {vr(t1)}, {vr(t2)}")


def max32(k, vs, ts):
    for pat in ("quad_perm:[1,0,3,2]", "quad_perm:[2,3,0,1]", "row_half_mirror", "row_mirror"):
        k.e("s_nop 1")
        for v in vs:
            k.e(f"v_max_f32_dpp {vr(v)}, {vr(v)}, {vr(v)} {pat} row_mask:0xf bank_mask:0xf")
    for i, v in enumerate(vs):
        k.e(f"v_mov_b32 {vr(ts[2 * i])}, {vr(v)}")
        k.e(f"v_mov_b32 {vr(ts[2 * i + 1])}, {vr(v)}")
    k.e("s_nop 1")
    for i, v in enumerate(vs):
        k.e(f"v_permlane16_swap_b32 {vr(ts[2 * i])}, {vr(ts[2 * i + 1])}")
    for i, v in enumerate(vs):
        k.e(f"v_max_f32 {vr(v)}, {vr(ts[2 * i])}, {vr(ts[2 * i + 1])}")
```

```python
from asmlib import *
from layout import *

DBG_STAMPS = [False]
ST_FLAGS = "sc1"


def entry(k, nwg, ptrs):
    k.end = k.L("end")
    stamp(k, 0)
    if getattr(k, "dbg_index", None) is not None:
        k.dbg_rt0 = k.s.alloc("dbg_rt0", 2, 2)
        k.e(f"s_memrealtime {sr(k.dbg_rt0, 2)}")
    k.e(f"s_cmp_ge_u32 s2, {nwg}")
    k.e(f"s_cbranch_scc1 {k.end}")
    srd = {}
    for name, arg, nbytes in ptrs:
        srd[name] = k.s.alloc("srd_" + name, 4, 4)
        k.e(f"s_load_dwordx2 {sr(srd[name], 2)}, s[0:1], {arg}")
    k.lane = k.v.alloc("lane")
    k.sw = k.s.alloc("wave")
    t = k.v.alloc("t_entry")
    k.e(f"v_lshrrev_b32 {vr(t)}, 6, v0")
    k.e(f"v_and_b32 {vr(k.lane)}, 63, v0")
    k.e(f"v_readfirstlane_b32 {sr(k.sw)}, {vr(t)}")
    k.v.free("t_entry")
    for name, arg, nbytes in ptrs:
        k.e(f"s_mov_b32 {sr(srd[name] + 2)}, {nbytes}")
        k.e(f"s_mov_b32 {sr(srd[name] + 3)}, {SRD3}")
    k.e("s_waitcnt lgkmcnt(0)")
    k.srd = {n: sr(b, 4) for n, b in srd.items()}
    return k.srd


def stamp(k, idx):
    if not getattr(k, "stamps", False):
        return
    if not hasattr(k, "stamp_regs"):
        k.stamp_regs = {}
    b = k.s.alloc(f"stamp{idx}", 2, 2)
    k.stamp_regs[idx] = b
    k.e(f"s_memtime {sr(b, 2)}")
    if idx == 0:
        k.rt0 = k.s.alloc("rt0", 2, 2)
        k.e(f"s_memrealtime {sr(k.rt0, 2)}")


def finish(k):
    if getattr(k, "dbg_index", None) is not None:
        i = k.dbg_index
        skip = k.L("nodbg")
        a = k.s.alloc("dbg_ptr", 4, 4)
        r1 = k.s.alloc("dbg_rt", 2, 2)
        so = k.s.alloc("dbg_so")
        k.e(f"s_cmp_lg_u32 {sr(k.sw)}, 0")
        k.e(f"s_cbranch_scc1 {skip}")
        k.e(f"s_load_dwordx2 {sr(a, 2)}, s[0:1], {ARG_DBG}")
        k.e("s_waitcnt vmcnt(0)")
        k.e(f"s_memrealtime {sr(r1, 2)}")
        k.e("s_waitcnt lgkmcnt(0)")
        k.e(f"s_mov_b32 {sr(a + 2)}, 64")
        k.e(f"s_mov_b32 {sr(a + 3)}, {SRD3}")
        k.e(f"s_mov_b32 {sr(so)}, {STAMP + 0x100000}")
        base = (k.v.top + 3) // 4 * 4
        k.v.top = base + 4
        k.e(f"v_mov_b32 {vr(base)}, {sr(k.dbg_rt0)}")
        k.e(f"v_mov_b32 {vr(base + 1)}, {sr(r1)}")
        k.e(f"v_mov_b32 {vr(base + 2)}, {12 * i}")
        l2 = k.L("dbg100")
        k.e("s_cmp_lg_u32 s2, 0")
        k.e(f"s_cbranch_scc1 {l2}")
        k.e("s_mov_b64 exec, 1")
        k.e(f"buffer_store_dwordx2 {vr(base, 2)}, {vr(base + 2)}, {k.srd['ws']}, {sr(so)} offen")
        k.e("s_mov_b64 exec, -1")
        if i == 4:
            k.e("s_waitcnt vmcnt(0)")
            k.e(f"v_lshlrev_b32 {vr(base + 2)}, 2, {vr(k.lane)}")
            k.e(f"buffer_load_dword {vr(base + 3)}, {vr(base + 2)}, {k.srd['ws']}, {sr(so)} offen sc1")
            k.e("s_waitcnt vmcnt(0)")
            k.e(f"buffer_store_dword {vr(base + 3)}, {vr(base + 2)}, {sr(a, 4)}, 0 offen")
        k.e(f"s_branch {skip}")
        k.lab(l2)
        k.e("s_cmp_lg_u32 s2, 100")
        k.e(f"s_cbranch_scc1 {skip}")
        k.e("s_mov_b64 exec, 1")
        k.e(f"buffer_store_dword {vr(base + 1)}, {vr(base + 2)}, {k.srd['ws']}, {sr(so)} offen offset:8")
        k.lab(skip)
    if getattr(k, "stamps", False):
        rt1 = k.s.alloc("rt1", 2, 2)
        last = k.s.alloc("tlast", 2, 2)
        k.e("s_waitcnt vmcnt(0)")
        k.e(f"s_memtime {sr(last, 2)}")
        k.e(f"s_memrealtime {sr(rt1, 2)}")
        k.e("s_waitcnt lgkmcnt(0)")
        base = (k.v.top + 3) // 4 * 4
        k.v.top = base + 10
        t0 = k.stamp_regs[0]
        k.e(f"v_mov_b32 {vr(base)}, {sr(k.rt0)}")
        k.e(f"v_mov_b32 {vr(base + 1)}, {sr(rt1)}")
        vals = [k.stamp_regs[i] for i in sorted(k.stamp_regs) if i > 0][:5] + [last]
        for i in range(6):
            if i < len(vals):
                k.e(f"s_sub_u32 {sr(vals[i])}, {sr(vals[i])}, {sr(t0)}")
                k.e(f"v_mov_b32 {vr(base + 2 + i)}, {sr(vals[i])}")
            else:
                k.e(f"v_mov_b32 {vr(base + 2 + i)}, 0")
        t = k.s.alloc("stamp_off")
        k.e(f"s_lshl_b32 {sr(t)}, s2, 4")
        k.e(f"s_add_u32 {sr(t)}, {sr(t)}, {sr(k.sw)}")
        k.e(f"s_lshl_b32 {sr(t)}, {sr(t)}, 5")
        k.e(f"s_add_u32 {sr(t)}, {sr(t)}, {STAMP + k.stamp_slot * 131072}")
        k.e(f"v_mov_b32 {vr(base + 8)}, 0")
        k.e("s_mov_b64 exec, 1")
        k.e(f"buffer_store_dwordx4 {vr(base, 4)}, {vr(base + 8)}, {k.srd['ws']}, {sr(t)} offen")
        k.e(f"buffer_store_dwordx4 {vr(base + 4, 4)}, {vr(base + 8)}, {k.srd['ws']}, {sr(t)} offen offset:16")
    k.lab(k.end)
    k.e("s_endpgm")


def half_sum(k, v, t1, t2):
    k.e(f"v_mov_b32 {vr(t1)}, {vr(v)}")
    k.e(f"v_mov_b32 {vr(t2)}, {vr(v)}")
    k.e("s_nop 1")
    k.e(f"v_permlane32_swap_b32 {vr(t1)}, {vr(t2)}")
    k.e(f"v_add_f32 {vr(v)}, {vr(t1)}, {vr(t2)}")


def half_max(k, v, t1, t2):
    k.e(f"v_mov_b32 {vr(t1)}, {vr(v)}")
    k.e(f"v_mov_b32 {vr(t2)}, {vr(v)}")
    k.e("s_nop 1")
    k.e(f"v_permlane32_swap_b32 {vr(t1)}, {vr(t2)}")
    k.e(f"v_max_f32 {vr(v)}, {vr(t1)}, {vr(t2)}")


def max32(k, vs, ts):
    for pat in ("quad_perm:[1,0,3,2]", "quad_perm:[2,3,0,1]", "row_half_mirror", "row_mirror"):
        k.e("s_nop 1")
        for v in vs:
            k.e(f"v_max_f32_dpp {vr(v)}, {vr(v)}, {vr(v)} {pat} row_mask:0xf bank_mask:0xf")
    for i, v in enumerate(vs):
        k.e(f"v_mov_b32 {vr(ts[2 * i])}, {vr(v)}")
        k.e(f"v_mov_b32 {vr(ts[2 * i + 1])}, {vr(v)}")
    k.e("s_nop 1")
    for i, v in enumerate(vs):
        k.e(f"v_permlane16_swap_b32 {vr(ts[2 * i])}, {vr(ts[2 * i + 1])}")
    for i, v in enumerate(vs):
        k.e(f"v_max_f32 {vr(v)}, {vr(ts[2 * i])}, {vr(ts[2 * i + 1])}")
```

```python
import re

TRANS = ("v_exp_f32", "v_log_f32", "v_rcp_f32", "v_rsq_f32", "v_sqrt_f32", "v_sin_f32", "v_cos_f32")


def vr(n, c=1):
    return f"v{n}" if c == 1 else f"v[{n}:{n + c - 1}]"


def ar(n, c=1):
    return f"a{n}" if c == 1 else f"a[{n}:{n + c - 1}]"


def sr(n, c=1):
    return f"s{n}" if c == 1 else f"s[{n}:{n + c - 1}]"


class Regs:
    def __init__(self, lo, hi):
        self.lo, self.hi = lo, hi
        self.used = {}
        self.top = lo

    def alloc(self, name, count=1, align=1):
        assert name not in self.used, name
        if count > 1 and align == 1:
            align = 2
        n = self.lo
        while True:
            n = (n + align - 1) // align * align
            clash = [(b, c) for b, c in self.used.values() if b < n + count and n < b + c]
            if not clash:
                break
            n = max(b + c for b, c in clash)
        assert n + count <= self.hi, f"out of registers for {name}"
        self.used[name] = (n, count)
        self.top = max(self.top, n + count)
        return n

    def free(self, *names):
        for name in names:
            del self.used[name]

    def mark(self):
        return dict(self.used)

    def release(self, mark):
        self.used = dict(mark)


class Kernel:
    def __init__(self, name, block, lds, grid=256):
        self.name, self.block, self.lds, self.grid = name, block, lds, grid
        self.lines = []
        self.v = Regs(1, 256)
        self.s = Regs(3, 100)
        self.a = Regs(0, 256)
        self.vm = []
        self.uid = 0
        self.accum_offset = None

    def e(self, text):
        for t in text.split("\n"):
            t = t.strip()
            if t:
                self._check(t)
                self.lines.append("    " + t)

    def c(self, text):
        self.lines.append("    ; " + text)

    def lab(self, name):
        self.lines.append(f"{name}:")

    def L(self, stem):
        self.uid += 1
        return f"L_{self.name[:-7]}_{stem}_{self.uid}"

    def _check(self, t):
        m = re.search(r"offset:(-?\d+)", t)
        if m:
            off = int(m.group(1))
            if t.startswith("buffer_"):
                assert 0 <= off <= 4095, t
            elif t.startswith("ds_"):
                assert 0 <= off <= 65535, t
            elif t.startswith("global_"):
                assert -4096 <= off <= 4095, t

    def vmem(self, text, tag):
        self.e(text)
        self.vm.append(tag)

    def vm_after(self, tag):
        idx = max(i for i, t in enumerate(self.vm) if t == tag)
        return len(self.vm) - 1 - idx

    def wait_vm(self, tag, lgkm=None):
        n = self.vm_after(tag)
        assert n <= 63, (tag, n)
        self.e(f"s_waitcnt vmcnt({n})" + (f" lgkmcnt({lgkm})" if lgkm is not None else ""))

    def text(self):
        head = f".globl {self.name}\n.p2align 8\n.type {self.name},@function\n{self.name}:\n"
        return head + "\n".join(self.lines) + "\n"

    def descriptor(self):
        nv = self.v.top
        na = self.a.top
        acc = (nv + 3) // 4 * 4
        total = acc + na if na else nv
        assert total <= 512
        return (f".amdhsa_kernel {self.name}\n"
                f"  .amdhsa_next_free_vgpr {total}\n"
                f"  .amdhsa_next_free_sgpr {max(self.s.top, 16)}\n"
                f"  .amdhsa_accum_offset {acc}\n"
                f"  .amdhsa_group_segment_fixed_size 0\n"
                f"  .amdhsa_kernarg_size 80\n"
                f"  .amdhsa_user_sgpr_count 2\n"
                f"  .amdhsa_user_sgpr_kernarg_segment_ptr 1\n"
                f"  .amdhsa_system_sgpr_workgroup_id_x 1\n"
                f".end_amdhsa_kernel\n")


_REG = re.compile(r"\b([vas])(?:(\d+)|\[(\d+):(\d+)\])")


def regs_of(op):
    out = set()
    for cls, one, lo, hi in _REG.findall(op):
        if one:
            out.add((cls, int(one)))
        else:
            out.update((cls, i) for i in range(int(lo), int(hi) + 1))
    if re.search(r"\bvcc\b", op):
        out.update({("s", 106), ("s", 107)})
    if re.search(r"\bm0\b", op):
        out.add(("s", 124))
    if re.search(r"\bexec\b", op):
        out.update({("s", 126), ("s", 127)})
    return out


class Ins:
    def __init__(self, text):
        self.text = text
        t = text.split(";")[0].strip()
        self.op = t.split()[0]
        rest = t[len(self.op):].strip()
        self.ops = [x.strip() for x in re.split(r",(?![^\[]*\])", rest)] if rest else []
        op = self.op
        self.mfma = op.startswith("v_mfma")
        self.valu = op.startswith("v_") and not self.mfma
        self.trans = any(op.startswith(x) for x in TRANS)
        self.salu = op.startswith("s_")
        self.ds = op.startswith("ds_")
        self.vmem = op.startswith(("buffer_", "global_"))
        self.dpp = "_dpp" in op or "row_" in t or "quad_perm" in t
        self.perm = op.startswith("v_permlane")
        self.passes = 8 if "32x32x16" in op else (4 if "16x16x32" in op else 0)
        self.states = 1
        if op == "s_nop":
            self.states = int(self.ops[0]) + 1
        R = [regs_of(o) for o in self.ops]
        self.w, self.r = set(), set()
        self.srcc = set()
        self.store_data = set()
        if self.mfma:
            self.w = R[0]
            self.ab = R[1] | R[2]
            self.srcc = R[3]
            self.r = self.ab | self.srcc
        elif self.valu:
            if op.startswith("v_cmp"):
                self.w = R[0]
                self.r = set().union(*R[1:])
            elif self.perm:
                self.w = R[0] | R[1]
                self.r = R[0] | R[1]
            elif op.startswith(("v_add_co", "v_addc_co", "v_sub_co")):
                self.w = R[0] | R[1]
                self.r = set().union(*R[2:])
            else:
                self.w = R[0]
                self.r = set().union(*R[1:]) if len(R) > 1 else set()
                if op.startswith(("v_fmac", "v_dot2c", "v_pk_fmac")) or "UNUSED_PRESERVE" in t or self.dpp:
                    self.r |= R[0]
                if op.startswith("v_cndmask") and "_e32" not in op and len(R) == 3:
                    self.r |= {("s", 106), ("s", 107)}
        elif self.ds:
            if op.startswith(("ds_read", "ds_bpermute", "ds_swizzle")):
                self.w = R[0]
                self.r = set().union(*R[1:])
            else:
                self.r = set().union(*R)
        elif self.vmem:
            lds = bool(re.search(r"\blds\b", t))
            if "store" in op or ("atomic" in op and "sc0" not in t):
                self.r = set().union(*R)
                if op.endswith(("x3", "x4")):
                    self.store_data = R[0] if op.startswith("buffer_") else R[1]
            elif lds:
                self.r = set().union(*R) | {("s", 124)}
            elif op in ("buffer_wbl2", "buffer_inv"):
                pass
            else:
                self.w = R[0]
                self.r = set().union(*R[1:])
            self.lds = lds
        elif self.salu:
            if op.startswith(("s_cmp", "s_waitcnt", "s_barrier", "s_nop", "s_cbranch", "s_branch", "s_endpgm", "s_setprio", "s_sleep", "s_bitcmp")):
                self.r = set().union(*R) if R else set()
            else:
                self.w = R[0] if R else set()
                self.r = set().union(*R[1:]) if len(R) > 1 else set()
                if "saveexec" in op:
                    self.w |= {("s", 126), ("s", 127)}
                    self.r |= {("s", 126), ("s", 127)}


def need(p, c):
    n = 0
    pv = {x for x in p.w if x[0] in "va"}
    ps = {x for x in p.w if x[0] == "s"}
    if p.valu and pv:
        if c.mfma and pv & c.r:
            n = max(n, 2)
        if (c.perm or c.dpp) and pv & c.r:
            n = max(n, 2)
        if c.op.startswith(("v_readfirstlane", "v_readlane")) and pv & c.r:
            n = max(n, 1)
        if p.trans and c.valu and not c.trans and pv & c.r:
            n = max(n, 1)
    if p.op.startswith("v_dot2") and pv:
        if c.op == p.op:
            srcs = set().union(*[regs_of(o) for o in c.ops[1:3]])
            if pv & srcs:
                n = max(n, 3)
        elif pv & (c.r | c.w):
            n = max(n, 3)
    if p.valu and ps:
        if c.vmem and ps & c.r:
            n = max(n, 5)
        if c.valu and ps & c.r:
            n = max(n, 2)
        if c.mfma and ps & {("s", 126), ("s", 127)}:
            n = max(n, 4)
    if p.mfma:
        big = p.passes == 8
        if c.mfma:
            if p.w & c.ab:
                n = max(n, 12 if big else 8)
            if p.w & c.srcc and not (p.w == c.srcc and p.passes == c.passes):
                n = max(n, 10 if big else 6)
        elif (c.valu or c.ds or c.vmem) and p.w & (c.r | c.w):
            n = max(n, 12 if big else 8)
        if c.valu and p.srcc & c.w and not (p.w & c.w):
            n = max(n, 7 if big else 3)
    if p.salu and ("s", 124) in p.w and c.vmem and getattr(c, "lds", False):
        n = max(n, 1)
    if p.store_data and (c.valu or c.mfma) and p.store_data & c.w:
        n = max(n, 2)
    if p.store_data and (c.ds or c.vmem) and p.store_data & c.w:
        n = max(n, 1)
    return n


def check_hazards(text, name=""):
    ins, labels = [], {}
    for line in text.split("\n"):
        t = line.split(";")[0].strip()
        if not t or t.startswith("."):
            continue
        if t.endswith(":"):
            labels[t[:-1]] = len(ins)
            continue
        ins.append(Ins(t))
    preds = [[] for _ in ins]
    for i, x in enumerate(ins):
        if x.op in ("s_endpgm",):
            continue
        if x.op == "s_branch":
            preds[labels[x.ops[0]]].append(i)
            continue
        if x.op.startswith("s_cbranch"):
            tgt = labels[x.ops[0]]
            if tgt < len(ins):
                preds[tgt].append(i)
        if i + 1 < len(ins):
            preds[i + 1].append(i)
    problems = []
    for i, c in enumerate(ins):
        if c.salu and not c.op.startswith("s_mov") :
            pass
        stack = [(p, 0) for p in preds[i]]
        seen = {}
        while stack:
            p, dist = stack.pop()
            if dist >= 20 or seen.get(p, 99) <= dist:
                continue
            seen[p] = dist
            n = need(ins[p], c)
            if n > dist:
                problems.append(f"{name}: need {n} states, have {dist}: [{ins[p].text}] -> [{c.text}]")
            for q in preds[p]:
                stack.append((q, dist + ins[p].states))
    return sorted(set(problems))
```

```python
from asmlib import *
from layout import *

ALL_PTRS = [("ws", ARG_WS, WS_USED), ("x", ARG_X, X_BYTES), ("wqkv", ARG_WQKV, WQKV_BYTES), ("wo", ARG_WO, WO_BYTES),
            ("wg", ARG_WG, WG_BYTES), ("wu", ARG_WU, WG_BYTES), ("wd", ARG_WD, WD_BYTES), ("out", ARG_OUT, OUT_BYTES),
            ("dbg", ARG_DBG, 256)]
ST = ST
SC = "sc1"


def entry(k, names, nwg=256):
    k.end = k.L("end")
    k.stamp_regs = {}
    stamp(k, 0)
    k.e(f"s_cmp_ge_u32 s2, {nwg}")
    k.e(f"s_cbranch_scc1 {k.end}")
    ptrs = [p for p in ALL_PTRS if p[0] in names]
    srd = {}
    for name, arg, nbytes in ptrs:
        srd[name] = k.s.alloc("srd_" + name, 4, 4)
        k.e(f"s_load_dwordx2 {sr(srd[name], 2)}, s[0:1], {arg}")
    k.lane = k.v.alloc("lane")
    k.l16 = k.v.alloc("l16")
    k.sw = k.s.alloc("wave")
    t = k.v.alloc("t_entry")
    k.e(f"v_lshrrev_b32 {vr(t)}, 6, v0")
    k.e(f"v_and_b32 {vr(k.lane)}, 63, v0")
    k.e(f"v_readfirstlane_b32 {sr(k.sw)}, {vr(t)}")
    k.e(f"v_lshlrev_b32 {vr(k.l16)}, 4, {vr(k.lane)}")
    k.v.free("t_entry")
    for name, arg, nbytes in ptrs:
        k.e(f"s_mov_b32 {sr(srd[name] + 2)}, {nbytes}")
        k.e(f"s_mov_b32 {sr(srd[name] + 3)}, {SRD3}")
    k.e("s_waitcnt lgkmcnt(0)")
    k.srd = {n: sr(b, 4) for n, b in srd.items()}


class Scope:
    def __init__(self, k):
        self.k = k

    def __enter__(self):
        self.mv, self.ms = self.k.v.mark(), self.k.s.mark()
        return self

    def __exit__(self, *a):
        keep_v = {n: r for n, r in self.k.v.used.items() if n.startswith("keep_")}
        keep_s = {n: r for n, r in self.k.s.used.items() if n.startswith(("keep_", "stamp", "rt0"))}
        self.k.v.release(self.mv)
        self.k.s.release(self.ms)
        self.k.v.used.update(keep_v)
        self.k.s.used.update(keep_s)


def stamp(k, idx):
    if not getattr(k, "stamps", False):
        return
    sel = getattr(k, "stamp_sel", None)
    if sel is not None and idx != 0:
        idx = sel.get((k.phase, idx))
        if idx is None:
            return
    if idx in k.stamp_regs:
        k.e(f"s_memtime {sr(k.stamp_regs[idx], 2)}")
        return
    b = k.s.alloc(f"stamp{idx}", 2, 2)
    k.stamp_regs[idx] = b
    k.e(f"s_memtime {sr(b, 2)}")
    if idx == 0:
        k.rt0 = k.s.alloc("rt0", 2, 2)
        k.e(f"s_memrealtime {sr(k.rt0, 2)}")
        sel = getattr(k, "stamp_sel", None)
        if sel is not None:
            for g in sorted(set(sel.values())):
                k.stamp_regs[g] = k.s.alloc(f"stamp{g}", 2, 2)
                k.e(f"s_mov_b64 {sr(k.stamp_regs[g], 2)}, 0")


def finish(k):
    if getattr(k, "stamps", False):
        rt1 = k.s.alloc("rt1", 2, 2)
        last = k.s.alloc("tlast", 2, 2)
        k.e("s_waitcnt vmcnt(0)")
        k.e(f"s_memtime {sr(last, 2)}")
        k.e(f"s_memrealtime {sr(rt1, 2)}")
        k.e("s_waitcnt lgkmcnt(0)")
        base = 232
        k.v.top = max(k.v.top, base + 20)
        t0 = k.stamp_regs[0]
        k.e(f"v_mov_b32 {vr(base)}, {sr(k.rt0)}")
        k.e(f"v_mov_b32 {vr(base + 1)}, {sr(rt1)}")
        nst = getattr(k, "nstamps", 5)
        vals = [k.stamp_regs.get(i) for i in range(1, nst + 1)] + [last]
        for i, v in enumerate(vals):
            if v is None:
                k.e(f"v_mov_b32 {vr(base + 2 + i)}, 0")
            else:
                k.e(f"s_sub_u32 {sr(v)}, {sr(v)}, {sr(t0)}")
                k.e(f"v_mov_b32 {vr(base + 2 + i)}, {sr(v)}")
        nd = (2 + len(vals) + 3) // 4
        t = k.s.alloc("stamp_off")
        k.e(f"s_lshl_b32 {sr(t)}, s2, 3")
        k.e(f"s_add_u32 {sr(t)}, {sr(t)}, {sr(k.sw)}")
        k.e(f"s_lshl_b32 {sr(t)}, {sr(t)}, 6")
        k.e(f"s_add_u32 {sr(t)}, {sr(t)}, {STAMP + k.stamp_slot * 131072}")
        k.e(f"v_mov_b32 {vr(base + 19)}, 0")
        k.e("s_mov_b64 exec, 1")
        for i in range(nd):
            k.e(f"buffer_store_dwordx4 {vr(base + 4 * i, 4)}, {vr(base + 19)}, {k.srd['ws']}, {sr(t)} offen offset:{16 * i}")
    k.lab(k.end)
    k.e("s_endpgm")


def half_sum(k, v, t1, t2):
    k.e(f"v_mov_b32 {vr(t1)}, {vr(v)}")
    k.e(f"v_mov_b32 {vr(t2)}, {vr(v)}")
    k.e("s_nop 1")
    k.e(f"v_permlane32_swap_b32 {vr(t1)}, {vr(t2)}")
    k.e(f"v_add_f32 {vr(v)}, {vr(t1)}, {vr(t2)}")


def half_max(k, v, t1, t2):
    k.e(f"v_mov_b32 {vr(t1)}, {vr(v)}")
    k.e(f"v_mov_b32 {vr(t2)}, {vr(v)}")
    k.e("s_nop 1")
    k.e(f"v_permlane32_swap_b32 {vr(t1)}, {vr(t2)}")
    k.e(f"v_max_f32 {vr(v)}, {vr(t1)}, {vr(t2)}")


def max32(k, vs, ts):
    for pat in ("quad_perm:[1,0,3,2]", "quad_perm:[2,3,0,1]", "row_half_mirror", "row_mirror"):
        k.e("s_nop 1")
        for v in vs:
            k.e(f"v_max_f32_dpp {vr(v)}, {vr(v)}, {vr(v)} {pat} row_mask:0xf bank_mask:0xf")
    for i, v in enumerate(vs):
        k.e(f"v_mov_b32 {vr(ts[2 * i])}, {vr(v)}")
        k.e(f"v_mov_b32 {vr(ts[2 * i + 1])}, {vr(v)}")
    k.e("s_nop 1")
    for i, v in enumerate(vs):
        k.e(f"v_permlane16_swap_b32 {vr(ts[2 * i])}, {vr(ts[2 * i + 1])}")
    for i, v in enumerate(vs):
        k.e(f"v_max_f32 {vr(v)}, {vr(ts[2 * i])}, {vr(ts[2 * i + 1])}")


def split_frag(k, val, dst, t, token_side):
    k.e(f"v_cvt_pk_bf16_f32 {vr(t)}, {vr(val)}, {vr(val)}")
    k.e(f"v_and_b32 {vr(t + 1)}, 0xffff0000, {vr(t)}")
    k.e(f"v_sub_f32 {vr(t + 1)}, {vr(val)}, {vr(t + 1)}")
    k.e(f"v_mov_b32 {vr(t + 2)}, 0")
    if token_side:
        k.e(f"v_cvt_pk_bf16_f32 {vr(t + 1)}, {vr(t + 1)}, {vr(t + 2)}")
        d0, d1 = t, t + 1
    else:
        k.e(f"v_cvt_pk_bf16_f32 {vr(t + 1)}, {vr(val)}, {vr(t + 1)}")
        k.e(f"v_and_b32 {vr(t)}, 0xffff, {vr(t)}")
        d0, d1 = t + 1, t
    k.e(f"v_mov_b32 {vr(dst + 2)}, 0")
    k.e(f"v_mov_b32 {vr(dst + 3)}, 0")
    k.e(f"v_cndmask_b32 {vr(dst)}, {vr(t + 2)}, {vr(d0)}, vcc")
    k.e(f"v_cndmask_b32 {vr(dst + 1)}, {vr(t + 2)}, {vr(d1)}, vcc")
```

```python
S, D, H, DH, F = 2048, 512, 32, 16, 1376
MB = 1 << 20
QF = 0 * MB
KF = 2 * MB
VF = 4 * MB
OF = 6 * MB
HF = 8 * MB
ACT = 10 * MB
FBP = 88
WOF = 16 * MB
WDF = WOF + MB // 2
WGUF = 18 * MB
KN = 22 * MB
ST = 21 * MB + MB // 4
CSP = 21 * MB + MB // 2
FLAGS = 21 * MB + 7 * MB // 8
STAMP = 22 * MB + MB // 2
WS_USED = 25 * MB

X_BYTES = S * D * 2
WQKV_BYTES = D * 3 * D * 2
WO_BYTES = D * D * 2
WG_BYTES = D * F * 2
WD_BYTES = F * D * 2
OUT_BYTES = S * D * 2

ARG_X, ARG_WQKV, ARG_WO, ARG_BX, ARG_WG, ARG_WU, ARG_WD, ARG_OUT, ARG_DBG, ARG_WS = (8 * i for i in range(10))
SRD3 = "0x00020000"
LOG2E = 1.4426950408889634


def f32hex(x):
    import struct
    return "0x%08x" % struct.unpack("<I", struct.pack("<f", x))[0]
```

```python
from common import *
import side

LX, LW = 0, 65536
SLOT = 24576
QSCALE = 0.25 * LOG2E
DIAG = False
PREFETCH = False
EARLY = 6
NOKN = False
LSIDE = LW


def phase1(k, with_side=True, st_flags=SC, before_x=None, after_x=None):
    s = {n: k.s.alloc("p1_" + n) for n in ("tb", "hg", "t", "t2", "rot")}
    k.e(f"s_bfe_u32 {sr(s['tb'])}, s2, 0x20001")
    k.e(f"s_lshl_b32 {sr(s['tb'])}, {sr(s['tb'])}, 3")
    k.e(f"s_bfe_u32 {sr(s['rot'])}, s2, 0x30003")
    k.e(f"s_add_u32 {sr(s['tb'])}, {sr(s['tb'])}, {sr(s['rot'])}")
    k.e(f"s_and_b32 {sr(s['hg'])}, s2, 1")
    k.e(f"s_lshl_b32 {sr(s['hg'])}, {sr(s['hg'])}, 2")
    k.e(f"s_lshr_b32 {sr(s['t'])}, s2, 6")
    k.e(f"s_add_u32 {sr(s['hg'])}, {sr(s['hg'])}, {sr(s['t'])}")
    k.p1_tb, k.p1_hg = s["tb"], s["hg"]
    with Scope(k):
        X = k.v.alloc("X", 32, 4)
        t = k.v.alloc("t", 16, 4)
        vx, aX, vw = k.v.alloc("vx"), k.v.alloc("aXw"), k.v.alloc("vw")
        k.e(f"v_lshrrev_b32 {vr(t)}, 3, {vr(k.lane)}")
        k.e(f"v_and_b32 {vr(t + 1)}, 7, {vr(k.lane)}")
        k.e(f"v_lshlrev_b32 {vr(vx)}, 10, {vr(t)}")
        k.e(f"v_lshl_add_u32 {vr(vx)}, {vr(t + 1)}, 4, {vr(vx)}")
        k.e(f"s_lshl_b32 {sr(s['t2'])}, {sr(s['tb'])}, 16")
        k.e(f"s_lshl_b32 {sr(s['t'])}, {sr(k.sw)}, 13")
        k.e(f"s_add_u32 {sr(s['t2'])}, {sr(s['t2'])}, {sr(s['t'])}")
        if before_x:
            before_x()
        k.vm = []
        for j in range(8):
            k.vmem(f"buffer_load_dwordx4 {vr(X + 4 * j, 4)}, {vr(vx)}, {k.srd['x']}, {sr(s['t2'])} offen offset:{j * 128}", "x")
        k.e(f"v_bfe_u32 {vr(t + 2)}, {vr(k.lane)}, 4, 1")
        k.e(f"v_lshlrev_b32 {vr(t + 2)}, 2, {vr(t + 2)}")
        k.e(f"v_xor_b32 {vr(t + 2)}, {vr(t + 2)}, {vr(t + 1)}")
        k.e(f"v_mul_u32_u24 {vr(vw)}, 3072, {vr(t)}")
        k.e(f"v_lshl_add_u32 {vr(vw)}, {vr(t + 2)}, 4, {vr(vw)}")
        wl, cc, sw_ = (k.s.alloc("ld_" + n) for n in ("wl", "cc", "sw"))
        wg = [k.s.alloc(f"ld_wg{i}") for i in range(6)]

        def piece_regs(n, wave_minus):
            k.e(f"s_sub_u32 {sr(cc)}, {sr(k.sw)}, {wave_minus}")
            k.e(f"s_mul_i32 {sr(cc)}, {sr(cc)}, {n}")
            k.e(f"s_lshl_b32 {sr(wl)}, {sr(cc)}, 10")
            k.e(f"s_add_u32 {sr(wl)}, {sr(wl)}, {LW}")
            for i in range(n):
                k.e(f"s_add_u32 {sr(s['t'])}, {sr(cc)}, {i}")
                k.e(f"s_lshr_b32 {sr(s['t2'])}, {sr(s['t'])}, 3")
                k.e(f"s_and_b32 {sr(s['t'])}, {sr(s['t'])}, 7")
                k.e(f"s_mul_i32 {sr(wg[i])}, {sr(s['t'])}, {8 * 3072}")
                k.e(f"s_lshl_b32 {sr(s['t2'])}, {sr(s['t2'])}, 10")
                k.e(f"s_add_u32 {sr(wg[i])}, {sr(wg[i])}, {sr(s['t2'])}")
                k.e(f"s_lshl_b32 {sr(s['t2'])}, {sr(s['hg'])}, 7")
                k.e(f"s_add_u32 {sr(wg[i])}, {sr(wg[i])}, {sr(s['t2'])}")

        def piece(c, i):
            if i == 0:
                k.e(f"s_add_u32 {sr(cc)}, {sr(s['rot'])}, {c}")
                k.e(f"s_and_b32 {sr(cc)}, {sr(cc)}, 7")
                k.e(f"s_mul_i32 {sr(sw_)}, {sr(cc)}, {64 * 3072}")
            k.e(f"s_add_u32 m0, {sr(wl)}, {(c & 3) * SLOT + i * 1024}")
            k.e(f"s_add_u32 {sr(s['t'])}, {sr(wg[i])}, {sr(sw_)}")
            k.vmem(f"buffer_load_dwordx4 {vr(vw)}, {k.srd['wqkv']}, {sr(s['t'])} offen lds", f"w{c}")

        if PREFETCH:
            prefetch_inputs(k, s, k.v.alloc('pfv', 2, 2))
        k.e(f"s_lshr_b32 {sr(s['t'])}, {sr(k.sw)}, 2")
        k.e(f"s_lshl_b32 {sr(s['t'])}, {sr(s['t'])}, 15")
        k.e(f"s_and_b32 {sr(s['t2'])}, {sr(k.sw)}, 3")
        k.e(f"s_lshl_b32 {sr(s['t2'])}, {sr(s['t2'])}, 3")
        k.e(f"v_add_u32 {vr(t + 3)}, {sr(s['t2'])}, {vr(t)}")
        k.e(f"v_xor_b32 {vr(t + 3)}, {vr(t + 3)}, {vr(t + 1)}")
        k.e(f"v_lshlrev_b32 {vr(aX)}, 4, {vr(t + 3)}")
        k.e(f"v_lshrrev_b32 {vr(t + 3)}, 1, {vr(t + 1)}")
        k.e(f"v_lshl_add_u32 {vr(aX)}, {vr(t + 3)}, 10, {vr(aX)}")
        k.e(f"v_and_b32 {vr(t + 3)}, 1, {vr(t + 1)}")
        k.e(f"v_lshl_add_u32 {vr(aX)}, {vr(t + 3)}, 9, {vr(aX)}")
        k.e(f"v_add_u32 {vr(aX)}, {sr(s['t'])}, {vr(aX)}")

        loader, done = k.L("p1_loader"), k.L("p1_done")
        k.e(f"s_cmp_ge_u32 {sr(k.sw)}, 4")
        k.e(f"s_cbranch_scc1 {loader}")
        vm0 = list(k.vm)
        with Scope(k):
            layernorm(k, X, t, aX, after_x)
            consumer(k, s, X, t, st_flags)
        k.e(f"s_branch {done}")
        k.lab(loader)
        k.vm = vm0
        with Scope(k):
            piece_regs(6, 4)
            for c in range(2):
                for i in range(6):
                    piece(c, i)
            layernorm(k, X, t, aX)
            if with_side:
                sd = side.side_regs(k, LSIDE)
                tmp = k.v.alloc("side_tmp", 40, 4)
                side.side_params(k, sd, 4)
            for c in range(8):
                if with_side and c > 5:
                    n = k.vm_after(f"w{c}")
                    plain, go = k.L("p1_w"), k.L("p1_wgo")
                    k.e(f"s_cmp_eq_u32 {sr(sd['type'])}, 0")
                    k.e(f"s_cbranch_scc1 {plain}")
                    k.e(f"s_waitcnt vmcnt({n + 8})")
                    k.e(f"s_branch {go}")
                    k.lab(plain)
                    k.e(f"s_waitcnt vmcnt({n})")
                    k.lab(go)
                else:
                    k.wait_vm(f"w{c}", lgkm=(0 if c == 0 else None))
                k.e("s_barrier")
                for cn in ((2, 3) if c == 0 else (c + 3,) if c <= 4 else ()):
                    for i in range(6):
                        piece(cn, i)
                if with_side and c == 5:
                    side.side_issue(k, sd, tmp)
            if with_side:
                k.e("s_waitcnt vmcnt(0)")
                side.side_finish(k, sd, tmp)
        k.lab(done)


def prefetch_inputs(k, s, v):
    j, a = k.s.alloc("pf_j"), k.s.alloc("pf_a")
    k.e(f"s_lshr_b32 {sr(j)}, s2, 3")
    skip, wpart, idle = k.L("pf_skip"), k.L("pf_w"), k.L("pf_idle")
    k.e(f"s_cmp_ge_u32 {sr(k.sw)}, 5")
    k.e(f"s_cbranch_scc1 {idle}")
    k.e(f"s_cmp_ge_u32 {sr(k.sw)}, 2")
    k.e(f"s_cbranch_scc1 {wpart}")
    k.e(f"s_lshl_b32 {sr(a)}, {sr(j)}, 1")
    k.e(f"s_add_u32 {sr(a)}, {sr(a)}, {sr(k.sw)}")
    k.e(f"s_lshl_b32 {sr(a)}, {sr(a)}, 13")
    k.e(f"s_bfe_u32 {sr(j)}, s2, 0x20001")
    k.e(f"s_lshl_b32 {sr(j)}, {sr(j)}, 19")
    k.e(f"s_add_u32 {sr(a)}, {sr(a)}, {sr(j)}")
    k.e(f"v_lshlrev_b32 {vr(v)}, 7, {vr(k.lane)}")
    k.e(f"buffer_load_dword {vr(v + 1)}, {vr(v)}, {k.srd['x']}, {sr(a)} offen")
    k.e(f"s_branch {skip}")
    k.lab(wpart)
    k.e(f"s_mul_i32 {sr(a)}, {sr(j)}, 3")
    k.e(f"s_add_u32 {sr(a)}, {sr(a)}, {sr(k.sw)}")
    k.e(f"s_sub_u32 {sr(a)}, {sr(a)}, 2")
    k.e(f"s_and_b32 {sr(j)}, {sr(a)}, 7")
    k.e(f"s_mul_i32 {sr(j)}, {sr(j)}, {64 * 3072}")
    k.e(f"s_lshr_b32 {sr(a)}, {sr(a)}, 3")
    k.e(f"s_mul_i32 {sr(s['t'])}, {sr(a)}, 43691")
    k.e(f"s_lshr_b32 {sr(s['t'])}, {sr(s['t'])}, 17")
    k.e(f"s_mul_i32 {sr(s['t2'])}, {sr(s['t'])}, 3")
    k.e(f"s_sub_u32 {sr(a)}, {sr(a)}, {sr(s['t2'])}")
    k.e(f"s_lshl_b32 {sr(a)}, {sr(a)}, 10")
    k.e(f"s_add_u32 {sr(j)}, {sr(j)}, {sr(a)}")
    k.e(f"s_and_b32 {sr(a)}, s2, 1")
    k.e(f"s_lshl_b32 {sr(a)}, {sr(a)}, 2")
    k.e(f"s_add_u32 {sr(a)}, {sr(a)}, {sr(s['t'])}")
    k.e(f"s_lshl_b32 {sr(a)}, {sr(a)}, 7")
    k.e(f"s_add_u32 {sr(a)}, {sr(a)}, {sr(j)}")
    k.e(f"v_mul_u32_u24 {vr(v)}, 3072, {vr(k.lane)}")
    k.e(f"buffer_load_dword {vr(v + 1)}, {vr(v)}, {k.srd['wqkv']}, {sr(a)} offen")
    k.e(f"s_branch {skip}")
    k.lab(idle)
    k.e("s_mov_b64 exec, 1")
    k.e(f"buffer_load_dword {vr(v + 1)}, {vr(k.l16)}, {k.srd['x']}, 0 offen")
    k.e("s_mov_b64 exec, -1")
    k.lab(skip)
    k.vm.append("pf")
    k.s.free("pf_j", "pf_a")


def layernorm(k, X, t, aX, after_x=None):
    ones = t + 2
    A = t + 4
    U = k.v.alloc("lnU", 16, 4)
    k.e(f"v_mov_b32 {vr(ones)}, 0x3f803f80")
    k.wait_vm("x")
    if after_x:
        after_x()
    stamp(k, 1)
    for i in range(32):
        x = X + i
        k.e(f"v_dot2_f32_bf16 {vr(A + (i & 3))}, {vr(x)}, {vr(ones)}, {vr(A + (i & 3)) if i > 3 else 0}")
        k.e(f"v_dot2_f32_bf16 {vr(A + 4 + (i & 3))}, {vr(x)}, {vr(x)}, {vr(A + 4 + (i & 3)) if i > 3 else 0}")
    k.e("s_nop 2")
    k.e(f"v_add_f32 {vr(A)}, {vr(A)}, {vr(A + 1)}")
    k.e(f"v_add_f32 {vr(A + 4)}, {vr(A + 4)}, {vr(A + 5)}")
    k.e(f"v_add_f32 {vr(A + 2)}, {vr(A + 2)}, {vr(A + 3)}")
    k.e(f"v_add_f32 {vr(A + 6)}, {vr(A + 6)}, {vr(A + 7)}")
    sm, sq = A, A + 4
    k.e(f"v_add_f32 {vr(sm)}, {vr(A)}, {vr(A + 2)}")
    k.e(f"v_add_f32 {vr(sq)}, {vr(A + 4)}, {vr(A + 6)}")
    for pat in ("quad_perm:[1,0,3,2]", "quad_perm:[2,3,0,1]", "row_half_mirror"):
        k.e("s_nop 1")
        k.e(f"v_add_f32_dpp {vr(sm)}, {vr(sm)}, {vr(sm)} {pat} row_mask:0xf bank_mask:0xf")
        k.e(f"v_add_f32_dpp {vr(sq)}, {vr(sq)}, {vr(sq)} {pat} row_mask:0xf bank_mask:0xf")
    k.e(f"v_mul_f32 {vr(sm)}, {f32hex(1.0 / D)}, {vr(sm)}")
    k.e(f"v_mul_f32 {vr(sq)}, {f32hex(1.0 / D)}, {vr(sq)}")
    k.e(f"v_fma_f32 {vr(sq)}, -{vr(sm)}, {vr(sm)}, {vr(sq)}")
    k.e(f"v_max_f32 {vr(sq)}, 0, {vr(sq)}")
    k.e(f"v_add_f32 {vr(sq)}, {f32hex(1e-5)}, {vr(sq)}")
    C = A + 8
    k.e(f"v_rsq_f32 {vr(C)}, {vr(sq)}")
    k.e("s_nop 0")
    k.e(f"v_mov_b32 {vr(C + 1)}, {vr(C)}")
    k.e(f"v_mul_f32 {vr(C + 2)}, -{vr(sm)}, {vr(C)}")
    k.e(f"v_mov_b32 {vr(C + 3)}, {vr(C + 2)}")
    for jj in range(0, 8, 2):
        for d in range(8):
            x = X + 4 * jj + d
            k.e(f"v_lshlrev_b32 {vr(U + 2 * d)}, 16, {vr(x)}")
            k.e(f"v_and_b32 {vr(U + 2 * d + 1)}, 0xffff0000, {vr(x)}")
        for d in range(8):
            k.e(f"v_pk_fma_f32 {vr(U + 2 * d, 2)}, {vr(U + 2 * d, 2)}, {vr(C, 2)}, {vr(C + 2, 2)}")
        for d in range(8):
            k.e(f"v_cvt_pk_bf16_f32 {vr(X + 4 * jj + d)}, {vr(U + 2 * d)}, {vr(U + 2 * d + 1)}")
            if d == 3:
                k.e(f"ds_write_b128 {vr(aX)}, {vr(X + 4 * jj, 4)} offset:{LX + jj * 4096}")
        k.e(f"ds_write_b128 {vr(aX)}, {vr(X + 4 * jj + 4, 4)} offset:{LX + (jj + 1) * 4096}")
    stamp(k, 2)


def consumer(k, s, X, t, st_flags):
    ws = k.srd["ws"]
    tt, hp, cc = k.s.alloc("tt"), k.s.alloc("hp"), k.s.alloc("cc")
    k.e(f"s_and_b32 {sr(tt)}, {sr(k.sw)}, 1")
    k.e(f"s_lshr_b32 {sr(hp)}, {sr(k.sw)}, 1")
    U = k.v.alloc("U2", 8, 4)
    aXb = k.v.alloc("aXb", 4)
    aXr = k.v.alloc("aXr", 4)
    aW = k.v.alloc("aW", 2)
    u0, u1 = U, U + 1
    k.e(f"v_and_b32 {vr(u0)}, 31, {vr(k.lane)}")
    k.e(f"v_lshrrev_b32 {vr(u1)}, 5, {vr(k.lane)}")
    k.e(f"s_lshl_b32 {sr(s['t'])}, {sr(tt)}, 15")
    for q in range(4):
        k.e(f"v_or_b32 {vr(U + 2)}, {2 * q}, {vr(u1)}")
        k.e(f"v_xor_b32 {vr(U + 2)}, {vr(U + 2)}, {vr(u0)}")
        k.e(f"v_lshlrev_b32 {vr(U + 2)}, 4, {vr(U + 2)}")
        k.e(f"v_lshl_add_u32 {vr(U + 2)}, {vr(u1)}, 9, {vr(U + 2)}")
        k.e(f"v_add_u32 {vr(aXb + q)}, {sr(s['t'])}, {vr(U + 2)}")
    k.e(f"v_bfe_u32 {vr(U + 2)}, {vr(k.lane)}, 4, 1")
    k.e(f"s_lshl_b32 {sr(s['t'])}, {sr(hp)}, 1")
    k.e(f"v_or_b32 {vr(U + 2)}, {sr(s['t'])}, {vr(U + 2)}")
    k.e(f"v_bfe_u32 {vr(U + 3)}, {vr(k.lane)}, 3, 1")
    k.e(f"v_lshlrev_b32 {vr(U + 3)}, 1, {vr(U + 3)}")
    k.e(f"v_xor_b32 {vr(U + 2)}, {vr(U + 2)}, {vr(U + 3)}")
    k.e(f"v_lshlrev_b32 {vr(U + 2)}, 5, {vr(U + 2)}")
    k.e(f"v_lshl_add_u32 {vr(U + 2)}, {vr(u1)}, 10, {vr(U + 2)}")
    k.e(f"v_bfe_u32 {vr(U + 3)}, {vr(k.lane)}, 2, 2")
    k.e(f"v_lshl_add_u32 {vr(U + 2)}, {vr(U + 3)}, 7, {vr(U + 2)}")
    k.e(f"v_and_b32 {vr(U + 3)}, 3, {vr(k.lane)}")
    k.e(f"v_lshl_add_u32 {vr(U + 2)}, {vr(U + 3)}, 3, {vr(U + 2)}")
    k.e(f"v_add_u32 {vr(aW)}, {LW}, {vr(U + 2)}")
    k.e(f"v_add_u32 {vr(aW + 1)}, {LW + 2 * SLOT}, {vr(U + 2)}")
    AQ, AK, AV = k.v.alloc("AQ", 16, 4), k.v.alloc("AK", 16, 4), k.v.alloc("AV", 16, 4)
    for i in range(16):
        for b in (AQ, AK, AV):
            k.e(f"v_mov_b32 {vr(b + i)}, 0")
    FX = [k.v.alloc(f"FX{i}", 4, 4) for i in range(4)]
    FW = [k.v.alloc(f"FW{i}", 12, 4) for i in range(4)]

    def xaddr(c):
        k.e(f"s_add_u32 {sr(cc)}, {sr(s['rot'])}, {c}")
        k.e(f"s_and_b32 {sr(cc)}, {sr(cc)}, 7")
        k.e(f"s_lshl_b32 {sr(cc)}, {sr(cc)}, 12")
        for q in range(4):
            k.e(f"v_add_u32 {vr(aXr + q)}, {sr(cc)}, {vr(aXb + q)}")

    def reads(ks):
        c, ksl, buf = ks >> 2, ks & 3, ks & 3
        out = [f"ds_read_b128 {vr(FX[buf], 4)}, {vr(aXr + ksl)} offset:{LX + ksl * 1024}"]
        for seg in range(3):
            for tr in range(2):
                off = (c & 1) * SLOT + seg * 8192 + ksl * 2048 + tr * 512
                out.append(f"ds_read_b64_tr_b16 {vr(FW[buf] + 4 * seg + 2 * tr, 2)}, {vr(aW + ((c & 3) >> 1))} offset:{off}")
        return out

    def mfmas(ks):
        buf = ks & 3
        return [f"v_mfma_f32_32x32x16_bf16 {vr(AQ, 16)}, {vr(FW[buf], 4)}, {vr(FX[buf], 4)}, {vr(AQ, 16)}",
                f"v_mfma_f32_32x32x16_bf16 {vr(AK, 16)}, {vr(FW[buf] + 4, 4)}, {vr(FX[buf], 4)}, {vr(AK, 16)}",
                f"v_mfma_f32_32x32x16_bf16 {vr(AV, 16)}, {vr(FX[buf], 4)}, {vr(FW[buf] + 8, 4)}, {vr(AV, 16)}"]

    xaddr(0)
    k.e("s_waitcnt lgkmcnt(0)")
    k.e("s_barrier")
    stamp(k, 3)
    for r in reads(0) + reads(1):
        k.e(r)
    for ks in range(32):
        m = mfmas(ks)
        if ks & 1:
            k.e(f"s_waitcnt lgkmcnt({14 if ks < 31 else 0})")
            for x in m:
                k.e(x)
            continue
        if (ks & 3) == 2 and ks < 30:
            k.e("s_waitcnt lgkmcnt(0)")
            k.e("s_barrier")
            if DIAG and ks in (2, 10, 18, 26):
                stamp(k, {2: 1, 10: 2, 18: 4, 26: 5}[ks])
            xaddr(ks // 4 + 1)
        else:
            k.e("s_waitcnt lgkmcnt(7)")
        nxt = reads(ks + 2) + reads(ks + 3) if ks + 2 < 32 else []
        for i, x in enumerate(m):
            k.e(x)
            for r in nxt[5 * i:5 * i + 5]:
                k.e(r)
    if not DIAG:
        stamp(k, 4)
    head0, tile, xo = k.s.alloc("head0"), k.s.alloc("tile"), k.s.alloc("xo")
    k.e(f"s_lshl_b32 {sr(head0)}, {sr(s['hg'])}, 2")
    k.e(f"s_lshl_b32 {sr(s['t'])}, {sr(hp)}, 1")
    k.e(f"s_add_u32 {sr(head0)}, {sr(head0)}, {sr(s['t'])}")
    k.e(f"s_lshl_b32 {sr(tile)}, {sr(s['tb'])}, 1")
    k.e(f"s_add_u32 {sr(tile)}, {sr(tile)}, {sr(tt)}")
    k.e(f"s_lshl_b32 {sr(s['t'])}, {sr(head0)}, 16")
    k.e(f"s_lshl_b32 {sr(s['t2'])}, {sr(tile)}, 10")
    k.e(f"s_add_u32 {sr(xo)}, {sr(s['t'])}, {sr(s['t2'])}")
    k.e(f"s_mov_b32 {sr(cc)}, {f32hex(QSCALE)}")
    P = X
    k.e("s_nop 2")
    for i in range(8):
        k.e(f"v_cvt_pk_bf16_f32 {vr(P + 8 + i)}, {vr(AK + 2 * i)}, {vr(AK + 2 * i + 1)}")
    for h in range(2):
        k.e(f"s_add_u32 {sr(s['t'])}, {sr(xo)}, {KF + h * 65536}")
        k.e(f"buffer_store_dwordx4 {vr(P + 8 + 4 * h, 4)}, {vr(k.l16)}, {ws}, {sr(s['t'])} offen {st_flags}")
    for i in range(8):
        k.e(f"v_cvt_pk_bf16_f32 {vr(P + 16 + i)}, {vr(AV + 2 * i)}, {vr(AV + 2 * i + 1)}")
    k.e(f"v_bfe_u32 {vr(U)}, {vr(k.lane)}, 4, 1")
    k.e(f"v_lshlrev_b32 {vr(U)}, 16, {vr(U)}")
    k.e(f"v_lshrrev_b32 {vr(U + 1)}, 5, {vr(k.lane)}")
    k.e(f"v_lshl_add_u32 {vr(U)}, {vr(U + 1)}, 8, {vr(U)}")
    k.e(f"v_and_b32 {vr(U + 1)}, 15, {vr(k.lane)}")
    k.e(f"v_lshl_add_u32 {vr(U)}, {vr(U + 1)}, 4, {vr(U)}")
    k.e(f"s_add_u32 {sr(s['t'])}, {sr(xo)}, {VF}")
    for b in range(2):
        k.e(f"buffer_store_dwordx4 {vr(P + 16 + 4 * b, 4)}, {vr(U)}, {ws}, {sr(s['t'])} offen offset:{b * 512} {st_flags}")
    for i in range(16):
        k.e(f"v_mul_f32 {vr(AQ + i)}, {sr(cc)}, {vr(AQ + i)}")
    for i in range(8):
        k.e(f"v_cvt_pk_bf16_f32 {vr(P + i)}, {vr(AQ + 2 * i)}, {vr(AQ + 2 * i + 1)}")
    for h in range(2):
        k.e(f"s_add_u32 {sr(s['t'])}, {sr(xo)}, {QF + h * 65536}")
        k.e(f"buffer_store_dwordx4 {vr(P + 4 * h, 4)}, {vr(k.l16)}, {ws}, {sr(s['t'])} offen {st_flags}")
    n0, n1 = t, t + 1
    k.e(f"v_mul_f32 {vr(n0)}, {vr(AK)}, {vr(AK)}")
    k.e(f"v_mul_f32 {vr(n1)}, {vr(AK + 8)}, {vr(AK + 8)}")
    for i in range(1, 8):
        k.e(f"v_fmac_f32 {vr(n0)}, {vr(AK + i)}, {vr(AK + i)}")
        k.e(f"v_fmac_f32 {vr(n1)}, {vr(AK + 8 + i)}, {vr(AK + 8 + i)}")
    k.e(f"v_mov_b32 {vr(t + 2)}, {vr(n0)}")
    k.e(f"v_mov_b32 {vr(t + 3)}, {vr(n1)}")
    k.e("s_nop 1")
    k.e(f"v_permlane32_swap_b32 {vr(n0)}, {vr(t + 2)}")
    k.e(f"v_permlane32_swap_b32 {vr(n1)}, {vr(t + 3)}")
    k.e(f"v_add_f32 {vr(n0)}, {vr(n0)}, {vr(t + 2)}")
    k.e(f"v_add_f32 {vr(n1)}, {vr(n1)}, {vr(t + 3)}")
    max32(k, [n0, n1], [t + 2, t + 3, t + 4, t + 5])
    k.e(f"v_cmp_gt_u32 vcc, 32, {vr(k.lane)}")
    k.e(f"s_lshl_b32 {sr(s['t'])}, {sr(head0)}, 13")
    k.e(f"s_lshl_b32 {sr(s['t2'])}, {sr(tile)}, 7")
    k.e(f"v_cndmask_b32 {vr(n0)}, {vr(n1)}, {vr(n0)}, vcc")
    k.e(f"s_add_u32 {sr(s['t'])}, {sr(s['t'])}, {sr(s['t2'])}")
    k.e(f"s_add_u32 {sr(s['t'])}, {sr(s['t'])}, {KN}")
    k.e(f"v_lshrrev_b32 {vr(t + 6)}, 5, {vr(k.lane)}")
    k.e(f"v_lshlrev_b32 {vr(t + 6)}, 13, {vr(t + 6)}")
    k.e(f"v_and_b32 {vr(t + 7)}, 31, {vr(k.lane)}")
    k.e(f"v_lshl_add_u32 {vr(t + 6)}, {vr(t + 7)}, 2, {vr(t + 6)}")
    k.e(f"buffer_store_dword {vr(n0)}, {vr(t + 6)}, {ws}, {sr(s['t'])} offen {st_flags}")
    if not DIAG:
        stamp(k, 5)
```

```python
from common import *
import side

LK, LV, LONES, LSIDE = 0, 65536, 131072, 135168
LKM = 159744
BOUND_MAX = 50.0


def step(k, r, i, extra=None):
    p = i & 1
    S0, S1 = r["S"][p], r["S"][1 - p]
    P0, P1 = r["P"], r["P"] + 4

    def e(S, *js):
        for j in js:
            k.e(f"v_exp_f32 {vr(S + j)}, {vr(S + j)}")

    def c(S, *js):
        for j in js:
            k.e(f"v_cvt_pk_bf16_f32 {vr(r['P'] + j // 2)}, {vr(S + j)}, {vr(S + j + 1)}")

    mf = lambda d, a, b, cc: k.e(f"v_mfma_f32_32x32x16_bf16 {vr(d, 16)}, {vr(a, 4)}, {vr(b, 4)}, {vr(cc, 16)}")
    e(S0, 4, 5); c(S0, 0, 2)
    k.e("s_waitcnt lgkmcnt(2)")
    mf(S1, r["K"][1 - p], r["Q"], r["negM"])
    k.e(f"ds_read_b128 {vr(r['K'][p], 4)}, {vr(r['aK'])} offset:{((i + 2) & 63) * 1024}")
    e(S0, 6, 7, 8, 9); c(S0, 4, 6); e(S0, 10, 11)
    if extra:
        extra()
    k.e("s_waitcnt lgkmcnt(1)")
    mf(r["O"], r["V"][p], P0, r["O"])
    e(S0, 12, 13); c(S0, 8, 10); e(S0, 14, 15)
    e(S1, 0, 1)
    c(S0, 12, 14)
    blk = 2 * ((i & 3) + 1)
    if (i & 3) == 3:
        k.e(f"v_add_u32 {vr(r['aV'])}, {vr(r['aV'])}, {vr(r['sV'])}")
        blk = 0
    k.e(f"ds_read_b128 {vr(r['V'][1 - p], 4)}, {vr(r['aV'])} offset:{blk * 512}")
    k.e(f"ds_read_b128 {vr(r['V'][1 - p] + 4, 4)}, {vr(r['aV'])} offset:{(blk + 1) * 512}")
    e(S1, 2, 3)
    mf(r["O"], r["V"][p] + 4, P1, r["O"])


def phase2(k, with_side=True, st_flags=SC, ld_flags=SC, pre=None, late=None, side_done=None):
    ws = k.srd["ws"]
    s = {n: k.s.alloc("p2_" + n) for n in ("head", "qt", "t", "t2", "hb", "kraw", "it", "w1k", "kg")}
    r = {"Q": k.v.alloc("Q", 4, 4), "negM": k.v.alloc("negM", 16, 4),
         "S": [k.v.alloc("S0", 16, 4), k.v.alloc("S1", 16, 4)], "P": k.v.alloc("P", 8, 4), "O": k.v.alloc("O", 16, 4),
         "K": [k.v.alloc("K0", 4, 4), k.v.alloc("K1", 4, 4)], "V": [k.v.alloc("V0", 8, 4), k.v.alloc("V1", 8, 4)],
         "aK": k.v.alloc("aK"), "aV": k.v.alloc("aV"), "sV": k.v.alloc("sV")}
    tmp = k.v.alloc("tmp", 40, 4)
    l16 = k.l16
    k.e(f"s_and_b32 {sr(s['head'])}, s2, 7")
    k.e(f"s_lshl_b32 {sr(s['head'])}, {sr(s['head'])}, 2")
    k.e(f"s_bfe_u32 {sr(s['t'])}, s2, 0x20003")
    k.e(f"s_add_u32 {sr(s['head'])}, {sr(s['head'])}, {sr(s['t'])}")
    k.e(f"s_lshr_b32 {sr(s['qt'])}, s2, 5")
    k.e(f"s_lshl_b32 {sr(s['qt'])}, {sr(s['qt'])}, 3")
    k.e(f"s_add_u32 {sr(s['qt'])}, {sr(s['qt'])}, {sr(k.sw)}")
    k.e(f"s_lshl_b32 {sr(s['hb'])}, {sr(s['head'])}, 16")
    k.e(f"s_add_u32 {sr(s['kraw'])}, {sr(s['hb'])}, {KF}")
    k.e(f"s_lshl_b32 {sr(s['w1k'])}, {sr(k.sw)}, 10")
    k.e(f"s_add_u32 {sr(s['kg'])}, {sr(s['kraw'])}, {sr(s['w1k'])}")

    def kv(c, which):
        k.e(f"s_add_u32 m0, {sr(s['w1k'])}, {(LK if which == 'k' else LV) + c * 8192}")
        k.e(f"s_add_u32 {sr(s['t2'])}, {sr(s['kg'])}, {(0 if which == 'k' else VF - KF) + c * 8192}")
        k.vmem(f"buffer_load_dwordx4 {vr(l16)}, {ws}, {sr(s['t2'])} offen {ld_flags} lds", f"{which}{c}")

    def setup():
        lab = k.L("noones")
        k.e(f"s_cmp_ge_u32 {sr(k.sw)}, 4")
        k.e(f"s_cbranch_scc1 {lab}")
        k.e(f"v_and_b32 {vr(tmp + 2)}, 11, v0")
        k.e(f"v_cmp_eq_u32 vcc, 0, {vr(tmp + 2)}")
        k.e(f"v_mov_b32 {vr(tmp + 3)}, 0x3f803f80")
        k.e(f"v_mov_b32 {vr(tmp + 8)}, 0")
        for i in range(4):
            k.e(f"v_cndmask_b32 {vr(tmp + 4 + i)}, {vr(tmp + 8)}, {vr(tmp + 3)}, vcc")
        k.e(f"v_lshlrev_b32 {vr(tmp + 2)}, 4, v0")
        k.e(f"v_add_u32 {vr(tmp + 2)}, {LONES}, {vr(tmp + 2)}")
        k.e(f"ds_write_b128 {vr(tmp + 2)}, {vr(tmp + 4, 4)}")
        k.lab(lab)
        k.e(f"v_mov_b32 {vr(r['aK'])}, {vr(l16)}")
        k.e(f"v_and_b32 {vr(tmp + 2)}, 15, {vr(k.lane)}")
        k.e(f"v_lshlrev_b32 {vr(tmp + 2)}, 4, {vr(tmp + 2)}")
        k.e(f"v_lshrrev_b32 {vr(tmp + 3)}, 5, {vr(k.lane)}")
        k.e(f"v_lshlrev_b32 {vr(tmp + 3)}, 8, {vr(tmp + 3)}")
        k.e(f"v_add_u32 {vr(tmp + 3)}, {vr(tmp + 3)}, {vr(tmp + 2)}")
        k.e(f"v_add_u32 {vr(tmp + 3)}, {LV}, {vr(tmp + 3)}")
        k.e(f"v_add_u32 {vr(tmp + 2)}, {LONES}, {vr(tmp + 2)}")
        k.e(f"v_and_b32 {vr(tmp + 8)}, 16, {vr(k.lane)}")
        k.e(f"v_cmp_eq_u32 vcc, 0, {vr(tmp + 8)}")
        k.e(f"v_mov_b32 {vr(tmp + 9)}, 4096")
        k.e(f"v_mov_b32 {vr(tmp + 10)}, 0")
        k.e(f"v_cndmask_b32 {vr(r['aV'])}, {vr(tmp + 2)}, {vr(tmp + 3)}, vcc")
        k.e(f"v_cndmask_b32 {vr(r['sV'])}, {vr(tmp + 10)}, {vr(tmp + 9)}, vcc")
        for i in range(16):
            k.e(f"v_mov_b32 {vr(r['O'] + i)}, 0")

    if pre:
        setup()
        pre()
    stamp(k, 1)
    k.vm = []
    k.e(f"s_lshl_b32 {sr(s['t'])}, {sr(s['qt'])}, 10")
    k.e(f"s_add_u32 {sr(s['t'])}, {sr(s['t'])}, {sr(s['hb'])}")
    if QF:
        k.e(f"s_add_u32 {sr(s['t'])}, {sr(s['t'])}, {QF}")
    k.vmem(f"buffer_load_dwordx4 {vr(r['Q'], 4)}, {vr(l16)}, {ws}, {sr(s['t'])} offen {ld_flags}", "q")
    kn, qn = tmp + 1, tmp + 11
    k.e(f"v_and_b32 {vr(tmp)}, 7, {vr(k.lane)}")
    k.e(f"v_lshlrev_b32 {vr(tmp)}, 7, {vr(tmp)}")
    k.e(f"s_lshl_b32 {sr(s['t'])}, {sr(s['head'])}, 13")
    k.e(f"s_add_u32 {sr(s['t'])}, {sr(s['t'])}, {sr(s['w1k'])}")
    k.e(f"s_add_u32 {sr(s['t'])}, {sr(s['t'])}, {KN}")
    k.vmem(f"buffer_load_dword {vr(kn)}, {vr(tmp)}, {ws}, {sr(s['t'])} offen {ld_flags}", "kn")
    kv(0, "k")
    kv(0, "v")
    if not pre:
        setup()
    if with_side:
        sd = side.side_regs(k, LSIDE)
        side.side_params(k, sd, 0)
    k.wait_vm("kn")
    k.e(f"v_dot2_f32_bf16 {vr(qn)}, {vr(r['Q'])}, {vr(r['Q'])}, 0")
    for i in range(1, 4):
        k.e(f"v_dot2_f32_bf16 {vr(qn)}, {vr(r['Q'] + i)}, {vr(r['Q'] + i)}, {vr(qn)}")
    for pat in ("quad_perm:[1,0,3,2]", "quad_perm:[2,3,0,1]", "row_half_mirror"):
        k.e("s_nop 1")
        k.e(f"v_max_f32_dpp {vr(kn)}, {vr(kn)}, {vr(kn)} {pat} row_mask:0xf bank_mask:0xf")
    k.e(f"s_lshl_b32 {sr(s['t'])}, {sr(k.sw)}, 2")
    k.e(f"s_add_u32 {sr(s['t'])}, {sr(s['t'])}, {LKM}")
    k.e(f"v_mov_b32 {vr(tmp + 4)}, {sr(s['t'])}")
    k.e(f"ds_write_b32 {vr(tmp + 4)}, {vr(kn)}")
    half_sum(k, qn, tmp + 6, tmp + 7)
    k.wait_vm("v0", lgkm=0)
    k.e("s_barrier")
    stamp(k, 2)
    k.e(f"v_mov_b32 {vr(tmp + 4)}, {LKM}")
    k.e(f"ds_read_b128 {vr(tmp + 12, 4)}, {vr(tmp + 4)}")
    k.e(f"ds_read_b128 {vr(tmp + 16, 4)}, {vr(tmp + 4)} offset:16")
    k.e(f"ds_read_b128 {vr(r['K'][0], 4)}, {vr(r['aK'])}")
    k.e(f"ds_read_b128 {vr(r['K'][1], 4)}, {vr(r['aK'])} offset:1024")
    k.e(f"ds_read_b128 {vr(r['V'][0], 4)}, {vr(r['aV'])}")
    k.e(f"ds_read_b128 {vr(r['V'][0] + 4, 4)}, {vr(r['aV'])} offset:512")
    k.e(f"s_mov_b32 {sr(s['t2'])}, {f32hex(BOUND_MAX)}")
    k.e("s_waitcnt lgkmcnt(4)")
    k.e(f"v_max3_f32 {vr(kn)}, {vr(tmp + 12)}, {vr(tmp + 13)}, {vr(tmp + 14)}")
    k.e(f"v_max3_f32 {vr(tmp + 2)}, {vr(tmp + 15)}, {vr(tmp + 16)}, {vr(tmp + 17)}")
    k.e(f"v_max3_f32 {vr(kn)}, {vr(tmp + 18)}, {vr(tmp + 19)}, {vr(kn)}")
    k.e(f"v_max_f32 {vr(kn)}, {vr(tmp + 2)}, {vr(kn)}")
    k.e(f"v_mul_f32 {vr(qn)}, {vr(qn)}, {vr(kn)}")
    k.e(f"v_sqrt_f32 {vr(qn)}, {vr(qn)}")
    k.e("s_nop 0")
    k.e(f"v_mul_f32 {vr(qn)}, {f32hex(1.01)}, {vr(qn)}")
    k.e(f"v_cmp_nge_f32 vcc, {sr(s['t2'])}, {vr(qn)}")
    fast, slow = k.L("fast"), k.L("slow")
    k.e("s_nop 4")
    k.e(f"s_cbranch_vccz {fast}")
    k.e(f"v_mov_b32 {vr(qn)}, 0xff800000")
    k.e(f"s_mov_b32 {sr(s['it'])}, 0")
    KS = tmp + 20
    k.lab(slow)
    k.e(f"s_lshl_b32 {sr(s['t2'])}, {sr(s['it'])}, 10")
    k.e(f"s_add_u32 {sr(s['t2'])}, {sr(s['t2'])}, {sr(s['kraw'])}")
    k.e(f"buffer_load_dwordx4 {vr(KS, 4)}, {vr(l16)}, {ws}, {sr(s['t2'])} offen {ld_flags}")
    k.e("s_waitcnt vmcnt(0)")
    k.e(f"v_mfma_f32_32x32x16_bf16 {vr(r['S'][0], 16)}, {vr(KS, 4)}, {vr(r['Q'], 4)}, 0")
    k.e("s_nop 11")
    for i in range(0, 16, 2):
        k.e(f"v_max3_f32 {vr(qn)}, {vr(r['S'][0] + i)}, {vr(r['S'][0] + i + 1)}, {vr(qn)}")
    k.e(f"s_add_u32 {sr(s['it'])}, {sr(s['it'])}, 1")
    k.e(f"s_cmp_lt_u32 {sr(s['it'])}, 64")
    k.e(f"s_cbranch_scc1 {slow}")
    half_max(k, qn, tmp + 4, tmp + 5)
    k.lab(fast)
    for i in range(16):
        k.e(f"v_sub_f32 {vr(r['negM'] + i)}, 0, {vr(qn)}")
    k.e("s_nop 0")
    k.e("s_waitcnt lgkmcnt(3)")
    k.e(f"v_mfma_f32_32x32x16_bf16 {vr(r['S'][0], 16)}, {vr(r['K'][0], 4)}, {vr(r['Q'], 4)}, {vr(r['negM'], 16)}")
    k.e("s_nop 11")
    for j in range(4):
        k.e(f"v_exp_f32 {vr(r['S'][0] + j)}, {vr(r['S'][0] + j)}")
    rest = [(c, w) for c in range(1, 8) for w in ("k", "v")]
    prio_at = {0: 3, 2: 2, 3: 1, 4: 0, 6: 3, 40: 2, 52: 1, 60: 0}
    for i in range(64):
        if i in prio_at:
            k.e(f"s_setprio {prio_at[i]}")

        def extra():
            for _ in range(3):
                if rest:
                    kv(*rest.pop(0))
        step(k, r, i, extra if i < 5 else None)
        if i == 5:
            assert not rest
            k.e("s_waitcnt vmcnt(0)")
            k.e("s_barrier")
            if with_side:
                side.side_issue(k, sd, tmp)
        if with_side and i == 20:
            k.e("s_waitcnt vmcnt(0)")
            side.side_finish(k, sd, tmp, (lambda: side_done(tmp)) if side_done else None)
        if late:
            late(i, tmp)
    stamp(k, 3)
    k.e("s_setprio 0")
    k.e("s_waitcnt lgkmcnt(0)")
    k.e(f"s_lshl_b32 {sr(s['t'])}, {sr(s['qt'])}, 15")
    k.e(f"s_lshl_b32 {sr(s['t2'])}, {sr(s['head'])}, 10")
    k.e(f"s_add_u32 {sr(s['t'])}, {sr(s['t'])}, {sr(s['t2'])}")
    k.e(f"s_add_u32 {sr(s['t'])}, {sr(s['t'])}, {OF}")
    k.e("s_nop 5")
    k.e(f"v_rcp_f32 {vr(r['P'])}, {vr(r['O'] + 8)}")
    k.e("s_nop 0")
    for i in range(8):
        k.e(f"v_mul_f32 {vr(r['O'] + i)}, {vr(r['O'] + i)}, {vr(r['P'])}")
    for i in range(4):
        k.e(f"v_cvt_pk_bf16_f32 {vr(r['K'][0] + i)}, {vr(r['O'] + 2 * i)}, {vr(r['O'] + 2 * i + 1)}")
    k.e(f"buffer_store_dwordx4 {vr(r['K'][0], 4)}, {vr(l16)}, {ws}, {sr(s['t'])} offen {st_flags}")
    stamp(k, 4)
```

```python
from common import *

CH = 8


def tile_ids(k, s):
    k.e(f"s_and_b32 {sr(s['tb'])}, s2, 7")
    k.e(f"s_lshl_b32 {sr(s['tb'])}, {sr(s['tb'])}, 2")
    k.e(f"s_bfe_u32 {sr(s['t'])}, s2, 0x20003")
    k.e(f"s_add_u32 {sr(s['tb'])}, {sr(s['tb'])}, {sr(s['t'])}")
    k.e(f"s_lshr_b32 {sr(s['fb'])}, s2, 5")


def consumer_ids(k, s):
    ft, tt, tile, ct = (k.s.alloc("c_" + n) for n in ("ft", "tt", "tile", "ct"))
    k.e(f"s_and_b32 {sr(ft)}, {sr(k.sw)}, 1")
    k.e(f"s_lshr_b32 {sr(tt)}, {sr(k.sw)}, 1")
    k.e(f"s_lshl_b32 {sr(tile)}, {sr(s['tb'])}, 1")
    k.e(f"s_add_u32 {sr(tile)}, {sr(tile)}, {sr(tt)}")
    k.e(f"s_lshl_b32 {sr(ct)}, {sr(s['fb'])}, 1")
    k.e(f"s_add_u32 {sr(ct)}, {sr(ct)}, {sr(ft)}")
    return ft, tt, tile, ct


def stream(k, g, l, goff, loff, n, tag, flags=""):
    t = k.s_tmp
    for i in range(0, n, 4):
        k.e(f"s_add_u32 m0, {sr(l)}, {loff + i * 1024}")
        k.e(f"s_add_u32 {sr(t)}, {sr(g)}, {goff + i * 1024}")
        for j in range(min(4, n - i)):
            k.vmem(f"buffer_load_dwordx4 {vr(k.l16)}, {k.srd['ws']}, {sr(t)} offen offset:{j * 1024} {flags} lds", tag)


def residual_add(k, ACC, R, T):
    for r in range(8):
        k.e(f"v_lshlrev_b32 {vr(T + 2 * (r & 1))}, 16, {vr(R + r)}")
        k.e(f"v_and_b32 {vr(T + 2 * (r & 1) + 1)}, 0xffff0000, {vr(R + r)}")
        k.e(f"v_add_f32 {vr(ACC + 2 * r)}, {vr(ACC + 2 * r)}, {vr(T + 2 * (r & 1))}")
        k.e(f"v_add_f32 {vr(ACC + 2 * r + 1)}, {vr(ACC + 2 * r + 1)}, {vr(T + 2 * (r & 1) + 1)}")


LA3, LB3, LX3 = 0, 65536, 131072


def phase3(k, st_flags=SC, ld_flags=SC, wait=None, keep_h=None):
    ws = k.srd["ws"]
    s = {n: k.s.alloc("p3_" + n) for n in ("tb", "fb", "t", "t2")}
    k.s_tmp = s["t"]
    tile_ids(k, s)
    loader, done = k.L("p3_loader"), k.L("p3_done")
    k.e(f"s_cmp_ge_u32 {sr(k.sw)}, 4")
    k.e(f"s_cbranch_scc1 {loader}")
    with Scope(k):
        ft, tt, tile, ct = consumer_ids(k, s)
        aA, aB = k.v.alloc("aA"), k.v.alloc("aB")
        k.e(f"s_lshl_b32 {sr(s['t'])}, {sr(ft)}, 15")
        k.e(f"v_add_u32 {vr(aA)}, {sr(s['t'])}, {vr(k.l16)}")
        k.e(f"s_lshl_b32 {sr(s['t'])}, {sr(tt)}, 15")
        k.e(f"s_add_u32 {sr(s['t'])}, {sr(s['t'])}, {LB3}")
        k.e(f"v_add_u32 {vr(aB)}, {sr(s['t'])}, {vr(k.l16)}")
        ACC = k.v.alloc("ACC", 16, 4)
        for i in range(16):
            k.e(f"v_mov_b32 {vr(ACC + i)}, 0")
        T = k.v.alloc("T", 8, 4)
        R = k.v.alloc("R", 8, 4)
        aR = k.v.alloc("aR", 4)
        k.e(f"v_and_b32 {vr(T)}, 31, {vr(k.lane)}")
        k.e(f"v_lshrrev_b32 {vr(T + 1)}, 5, {vr(k.lane)}")
        k.e(f"v_bfe_u32 {vr(T + 2)}, {vr(k.lane)}, 1, 3")
        k.e(f"v_lshlrev_b32 {vr(T + 3)}, 7, {vr(T)}")
        k.e(f"v_lshl_add_u32 {vr(T + 3)}, {vr(T + 1)}, 3, {vr(T + 3)}")
        k.e(f"s_lshl_b32 {sr(s['t'])}, {sr(tt)}, 12")
        k.e(f"s_add_u32 {sr(s['t'])}, {sr(s['t'])}, {LX3}")
        k.e(f"v_add_u32 {vr(T + 3)}, {sr(s['t'])}, {vr(T + 3)}")
        k.e(f"s_lshl_b32 {sr(s['t2'])}, {sr(ft)}, 2")
        for q in range(4):
            k.e(f"v_xor_b32 {vr(T + 4)}, {sr(s['t2'])}, {vr(T + 2)}")
            k.e(f"v_xor_b32 {vr(T + 4)}, {q}, {vr(T + 4)}")
            k.e(f"v_lshl_add_u32 {vr(aR + q)}, {vr(T + 4)}, 4, {vr(T + 3)}")
        if wait:
            wait("poll")
        NB, AHEAD = 4, 3
        FA = [k.v.alloc(f"FA{i}", 4, 4) for i in range(NB)]
        FB = [k.v.alloc(f"FB{i}", 4, 4) for i in range(NB)]

        def reads(n):
            k.e(f"ds_read_b128 {vr(FA[n % NB], 4)}, {vr(aA)} offset:{n * 1024}")
            k.e(f"ds_read_b128 {vr(FB[n % NB], 4)}, {vr(aB)} offset:{n * 1024}")

        k.e("s_barrier")
        stamp(k, 1)
        for n in range(AHEAD):
            reads(n)
        for n in range(32):
            m = n + AHEAD
            if m < 32:
                if m % CH == 0:
                    k.e("s_barrier")
                reads(m)
            k.e(f"s_waitcnt lgkmcnt({2 * (min(31, m) - n)})")
            k.e(f"v_mfma_f32_32x32x16_bf16 {vr(ACC, 16)}, {vr(FA[n % NB], 4)}, {vr(FB[n % NB], 4)}, {vr(ACC, 16)}")
        stamp(k, 2)
        for q in range(4):
            k.e(f"ds_read_b64 {vr(R + 2 * q, 2)}, {vr(aR + q)}")
        k.e(f"s_lshl_b32 {sr(s['t'])}, {sr(tile)}, 15")
        k.e(f"s_lshl_b32 {sr(s['t2'])}, {sr(ct)}, 11")
        k.e(f"s_add_u32 {sr(s['t'])}, {sr(s['t'])}, {sr(s['t2'])}")
        k.e(f"s_add_u32 {sr(s['t'])}, {sr(s['t'])}, {HF}")
        k.e("s_nop 3")
        k.e("s_waitcnt lgkmcnt(0)")
        residual_add(k, ACC, R, T)
        P = keep_h if keep_h is not None else R
        for r in range(8):
            k.e(f"v_cvt_pk_bf16_f32 {vr(P + r)}, {vr(ACC + 2 * r)}, {vr(ACC + 2 * r + 1)}")
        for b in range(2):
            k.e(f"buffer_store_dwordx4 {vr(P + 4 * b, 4)}, {vr(k.l16)}, {ws}, {sr(s['t'])} offen offset:{b * 1024} {st_flags}")
        sm, sq, sm2, sq2 = T, T + 1, T + 2, T + 3
        k.e(f"v_add_f32 {vr(sm)}, {vr(ACC)}, {vr(ACC + 1)}")
        k.e(f"v_mul_f32 {vr(sq)}, {vr(ACC)}, {vr(ACC)}")
        k.e(f"v_add_f32 {vr(sm2)}, {vr(ACC + 2)}, {vr(ACC + 3)}")
        k.e(f"v_mul_f32 {vr(sq2)}, {vr(ACC + 1)}, {vr(ACC + 1)}")
        k.e(f"v_fmac_f32 {vr(sq)}, {vr(ACC + 2)}, {vr(ACC + 2)}")
        k.e(f"v_fmac_f32 {vr(sq2)}, {vr(ACC + 3)}, {vr(ACC + 3)}")
        for i in range(4, 16, 2):
            k.e(f"v_add_f32 {vr(sm)}, {vr(sm)}, {vr(ACC + i)}")
            k.e(f"v_fmac_f32 {vr(sq)}, {vr(ACC + i)}, {vr(ACC + i)}")
            k.e(f"v_add_f32 {vr(sm2)}, {vr(sm2)}, {vr(ACC + i + 1)}")
            k.e(f"v_fmac_f32 {vr(sq2)}, {vr(ACC + i + 1)}, {vr(ACC + i + 1)}")
        k.e(f"v_add_f32 {vr(sm)}, {vr(sm)}, {vr(sm2)}")
        k.e(f"v_add_f32 {vr(sq)}, {vr(sq)}, {vr(sq2)}")
        k.e(f"s_lshl_b32 {sr(s['t'])}, {sr(tile)}, 12")
        k.e(f"s_lshl_b32 {sr(s['t2'])}, {sr(ct)}, 8")
        k.e(f"v_permlane32_swap_b32 {vr(sm)}, {vr(sq)}")
        k.e(f"s_add_u32 {sr(s['t'])}, {sr(s['t'])}, {sr(s['t2'])}")
        k.e(f"s_add_u32 {sr(s['t'])}, {sr(s['t'])}, {ST}")
        k.e(f"v_add_f32 {vr(sm)}, {vr(sm)}, {vr(sq)}")
        k.e(f"v_lshlrev_b32 {vr(T + 2)}, 2, {vr(k.lane)}")
        k.e(f"buffer_store_dword {vr(sm)}, {vr(T + 2)}, {ws}, {sr(s['t'])} offen {st_flags}")
        stamp(k, 3)
    k.e(f"s_branch {done}")
    k.lab(loader)
    with Scope(k):
        k.vm = []
        ga, gb, la, lb = (k.s.alloc("ld_" + n) for n in ("ga", "gb", "la", "lb"))
        tl, hf = k.s.alloc("ld_tl"), k.s.alloc("ld_hf")
        k.e(f"s_and_b32 {sr(tl)}, {sr(k.sw)}, 1")
        k.e(f"s_bfe_u32 {sr(hf)}, {sr(k.sw)}, 0x10001")
        k.e(f"s_lshl_b32 {sr(hf)}, {sr(hf)}, 12")
        k.e(f"s_lshl_b32 {sr(la)}, {sr(tl)}, 15")
        k.e(f"s_add_u32 {sr(la)}, {sr(la)}, {sr(hf)}")
        k.e(f"s_add_u32 {sr(lb)}, {sr(la)}, {LB3}")
        k.e(f"s_lshl_b32 {sr(ga)}, {sr(s['fb'])}, 16")
        k.e(f"s_add_u32 {sr(ga)}, {sr(ga)}, {sr(la)}")
        k.e(f"s_add_u32 {sr(ga)}, {sr(ga)}, {WOF}")
        k.e(f"s_lshl_b32 {sr(gb)}, {sr(s['tb'])}, 16")
        k.e(f"s_add_u32 {sr(gb)}, {sr(gb)}, {sr(la)}")
        k.e(f"s_add_u32 {sr(gb)}, {sr(gb)}, {OF}")

        def xtile():
            a, b = k.v.alloc("xa"), k.v.alloc("xb")
            for pi in range(2):
                k.e(f"v_lshrrev_b32 {vr(a)}, 3, {vr(k.lane)}")
                k.e(f"v_lshrrev_b32 {vr(b)}, 4, {vr(k.lane)}")
                k.e(f"v_or_b32 {vr(b)}, {4 * pi}, {vr(b)}")
                k.e(f"v_xor_b32 {vr(b)}, {vr(b)}, {vr(k.lane)}")
                k.e(f"v_and_b32 {vr(b)}, 7, {vr(b)}")
                k.e(f"v_lshlrev_b32 {vr(a)}, 10, {vr(a)}")
                k.e(f"v_lshl_add_u32 {vr(a)}, {vr(b)}, 4, {vr(a)}")
                k.e(f"s_sub_u32 {sr(s['t'])}, {sr(k.sw)}, 4")
                k.e(f"s_lshl_b32 {sr(s['t'])}, {sr(s['t'])}, 1")
                k.e(f"s_add_u32 {sr(s['t'])}, {sr(s['t'])}, {pi}")
                k.e(f"s_lshl_b32 {sr(s['t2'])}, {sr(s['t'])}, 10")
                k.e(f"s_add_u32 m0, {sr(s['t2'])}, {LX3}")
                k.e(f"s_lshl_b32 {sr(s['t'])}, {sr(s['t'])}, 13")
                k.e(f"s_lshl_b32 {sr(s['t2'])}, {sr(s['tb'])}, 16")
                k.e(f"s_add_u32 {sr(s['t'])}, {sr(s['t'])}, {sr(s['t2'])}")
                k.e(f"s_lshl_b32 {sr(s['t2'])}, {sr(s['fb'])}, 7")
                k.e(f"s_add_u32 {sr(s['t'])}, {sr(s['t'])}, {sr(s['t2'])}")
                k.vmem(f"buffer_load_dwordx4 {vr(a)}, {k.srd['x']}, {sr(s['t'])} offen lds", "x")

        if wait:
            for c in range(4):
                stream(k, ga, la, c * 8192, LA3 + c * 8192, 4, f"a{c}", ld_flags)
            xtile()
            wait("load")
            for c in range(4):
                stream(k, gb, lb, c * 8192, c * 8192, 4, f"b{c}", ld_flags)
                if c >= 1:
                    k.wait_vm(f"b{c - 1}")
                    k.e("s_barrier")
            k.wait_vm("b3")
            k.e("s_barrier")
        else:
            for c in range(4):
                stream(k, ga, la, c * 8192, LA3 + c * 8192, 4, f"a{c}", ld_flags)
                stream(k, gb, lb, c * 8192, c * 8192, 4, f"b{c}", ld_flags)
                if c == 1:
                    xtile()
                if c == 1:
                    k.wait_vm("b0")
                    k.e("s_barrier")
                if c >= 2:
                    k.wait_vm(f"b{c - 1}")
                    k.e("s_barrier")
            k.wait_vm("b3")
            k.e("s_barrier")
    k.lab(done)


SLOT5 = 4 * CH * 1024
NS5 = 5


def phase5(k, ld_flags=SC, wait=None, keep_h=None):
    ws = k.srd["ws"]
    nsteps = 86
    nchunks = (nsteps + CH - 1) // CH
    s = {n: k.s.alloc("p5_" + n) for n in ("tb", "fb", "t", "t2")}
    k.s_tmp = s["t"]
    tile_ids(k, s)
    loader, done = k.L("p5_loader"), k.L("p5_done")
    k.e(f"s_cmp_ge_u32 {sr(k.sw)}, 4")
    k.e(f"s_cbranch_scc1 {loader}")
    with Scope(k):
        ft, tt, tile, ct = consumer_ids(k, s)
        if keep_h is None:
            R = k.v.alloc("R", 8, 4)
            k.e(f"s_lshl_b32 {sr(s['t'])}, {sr(tile)}, 15")
            k.e(f"s_lshl_b32 {sr(s['t2'])}, {sr(ct)}, 11")
            k.e(f"s_add_u32 {sr(s['t'])}, {sr(s['t'])}, {sr(s['t2'])}")
            k.e(f"s_add_u32 {sr(s['t'])}, {sr(s['t'])}, {HF}")
            for b in range(2):
                k.e(f"buffer_load_dwordx4 {vr(R + 4 * b, 4)}, {vr(k.l16)}, {ws}, {sr(s['t'])} offen offset:{b * 1024} {ld_flags}")
        else:
            R = keep_h
        aA, aB = k.v.alloc("aA", 3), k.v.alloc("aB", 3)
        k.e(f"s_lshl_b32 {sr(s['t'])}, {sr(ft)}, 13")
        k.e(f"s_lshl_b32 {sr(s['t2'])}, {sr(tt)}, 13")
        k.e(f"s_add_u32 {sr(s['t2'])}, {sr(s['t2'])}, {2 * CH * 1024}")
        for i in range(3):
            k.e(f"v_add_u32 {vr(aA + i)}, {sr(s['t'])}, {vr(k.l16)}")
            k.e(f"v_add_u32 {vr(aB + i)}, {sr(s['t2'])}, {vr(k.l16)}")
            if i:
                k.e(f"v_add_u32 {vr(aA + i)}, {i * 2 * SLOT5}, {vr(aA + i)}")
                k.e(f"v_add_u32 {vr(aB + i)}, {i * 2 * SLOT5}, {vr(aB + i)}")
        ACC = k.v.alloc("ACC", 16, 4)
        for i in range(16):
            k.e(f"v_mov_b32 {vr(ACC + i)}, 0")
        T = k.v.alloc("T", 12, 4)
        aO = k.v.alloc("aO")
        k.e(f"v_and_b32 {vr(aO)}, 31, {vr(k.lane)}")
        k.e(f"v_lshlrev_b32 {vr(aO)}, 10, {vr(aO)}")
        k.e(f"v_lshrrev_b32 {vr(T)}, 5, {vr(k.lane)}")
        k.e(f"v_lshl_add_u32 {vr(aO)}, {vr(T)}, 4, {vr(aO)}")
        if wait:
            wait("poll")
        NB = 6
        FA = [k.v.alloc(f"FA{i}", 4, 4) for i in range(NB)]
        FB = [k.v.alloc(f"FB{i}", 4, 4) for i in range(NB)]

        def reads(n):
            c, ksl = divmod(n, CH)
            slot = c % NS5
            off = (slot & 1) * SLOT5 + ksl * 1024
            k.e(f"ds_read_b128 {vr(FA[n % NB], 4)}, {vr(aA + (slot >> 1))} offset:{off}")
            k.e(f"ds_read_b128 {vr(FB[n % NB], 4)}, {vr(aB + (slot >> 1))} offset:{off}")

        AHEAD = 5
        issued = 0
        k.e("s_barrier")
        stamp(k, 1)
        for n in range(nsteps):
            c = n // CH
            end = min(nsteps, (c + 1) * CH)
            if n == end - 2 and end < nsteps:
                k.e("s_waitcnt lgkmcnt(0)")
                k.e("s_barrier")
                lim = min(nsteps, n + AHEAD + 1, end + CH)
                lim = min(lim, n + NB)
                while issued < lim:
                    reads(issued); issued += 1
            else:
                lim = min(n + AHEAD + 1, nsteps, end if n < end - 2 else end + CH, n + NB)
                while issued < lim:
                    reads(issued); issued += 1
                k.e(f"s_waitcnt lgkmcnt({min(15, 2 * (issued - n - 1))})")
            k.e(f"v_mfma_f32_32x32x16_bf16 {vr(ACC, 16)}, {vr(FA[n % NB], 4)}, {vr(FB[n % NB], 4)}, {vr(ACC, 16)}")
        stamp(k, 2)
        k.e(f"s_lshl_b32 {sr(s['t'])}, {sr(tile)}, 15")
        k.e(f"s_lshl_b32 {sr(s['t2'])}, {sr(ct)}, 6")
        k.e(f"s_add_u32 {sr(s['t'])}, {sr(s['t'])}, {sr(s['t2'])}")
        if keep_h is None:
            k.e("s_waitcnt vmcnt(0)")
        k.e("s_nop 7")
        residual_add(k, ACC, R, T)
        P = T + 4
        for r in range(8):
            k.e(f"v_cvt_pk_bf16_f32 {vr(P + r)}, {vr(ACC + 2 * r)}, {vr(ACC + 2 * r + 1)}")
        k.e("s_nop 1")
        for b in range(2):
            k.e(f"v_permlane32_swap_b32 {vr(P + 4 * b)}, {vr(P + 4 * b + 2)}")
            k.e(f"v_permlane32_swap_b32 {vr(P + 4 * b + 1)}, {vr(P + 4 * b + 3)}")
        for b in range(2):
            k.e(f"buffer_store_dwordx4 {vr(P + 4 * b, 4)}, {vr(aO)}, {k.srd['out']}, {sr(s['t'])} offen offset:{b * 32}")
        stamp(k, 3)
    k.e(f"s_branch {done}")
    k.lab(loader)
    with Scope(k):
        g, l = k.s.alloc("ld_g"), k.s.alloc("ld_l")
        lB, lgo = k.L("p5_ldB"), k.L("p5_ldgo")
        k.e(f"s_sub_u32 {sr(l)}, {sr(k.sw)}, 4")
        k.e(f"s_lshl_b32 {sr(l)}, {sr(l)}, 13")
        k.e(f"s_cmp_ge_u32 {sr(k.sw)}, 6")
        k.e(f"s_cbranch_scc1 {lB}")

        def chunk(c, flags):
            n0, n1 = c * CH, min(nsteps, (c + 1) * CH)
            stream(k, g, l, n0 * 1024, (c % NS5) * SLOT5, n1 - n0, f"c{c}", flags)

        def tail(first_free, flags):
            nxt = first_free
            for c in range(nchunks):
                k.wait_vm(f"c{c}")
                k.e("s_barrier")
                lim = min(nchunks, c + NS5 if c >= 1 else NS5)
                if nxt < lim:
                    chunk(nxt, flags)
                    nxt += 1
            assert nxt == nchunks, nxt

        k.vm = []
        k.e(f"s_lshl_b32 {sr(s['t'])}, {sr(s['fb'])}, 1")
        k.e(f"s_add_u32 {sr(s['t'])}, {sr(s['t'])}, {sr(k.sw)}")
        k.e(f"s_sub_u32 {sr(s['t'])}, {sr(s['t'])}, 4")
        k.e(f"s_mul_i32 {sr(g)}, {sr(s['t'])}, {FBP * 1024}")
        k.e(f"s_add_u32 {sr(g)}, {sr(g)}, {WDF}")
        n0 = NS5 if wait else 3
        for c in range(n0):
            chunk(c, ld_flags)
        if wait:
            wait("load")
        tail(n0, ld_flags)
        k.e(f"s_branch {done}")
        k.lab(lB)
        k.vm = []
        k.e(f"s_lshl_b32 {sr(s['t'])}, {sr(s['tb'])}, 1")
        k.e(f"s_add_u32 {sr(s['t'])}, {sr(s['t'])}, {sr(k.sw)}")
        k.e(f"s_sub_u32 {sr(s['t'])}, {sr(s['t'])}, 6")
        k.e(f"s_mul_i32 {sr(g)}, {sr(s['t'])}, {FBP * 1024}")
        k.e(f"s_add_u32 {sr(g)}, {sr(g)}, {ACT}")
        if wait:
            wait("load")
        for c in range(3):
            chunk(c, ld_flags)
        tail(3, ld_flags)
    k.lab(done)
```

```python
from common import *

NST = 33
TSTR = NST * 1024
LW = 0
LSC = 3 * TSTR
RING = 12
ROW_ALIGNED = True


def phase4(k, st_flags=SC, ld_flags=SC, wait=None, skip_to=None):
    ws = k.srd["ws"]
    s = {n: k.s.alloc("p4_" + n) for n in ("mt", "nt", "t", "t2", "tile", "hg", "fb0")}
    if ROW_ALIGNED:
        k.e(f"s_and_b32 {sr(s['mt'])}, s2, 7")
        k.e(f"s_lshr_b32 {sr(s['nt'])}, s2, 3")
    else:
        k.e(f"s_and_b32 {sr(s['mt'])}, s2, 1")
        k.e(f"s_lshl_b32 {sr(s['mt'])}, {sr(s['mt'])}, 2")
        k.e(f"s_bfe_u32 {sr(s['t'])}, s2, 0x20003")
        k.e(f"s_add_u32 {sr(s['mt'])}, {sr(s['mt'])}, {sr(s['t'])}")
        k.e(f"s_bfe_u32 {sr(s['nt'])}, s2, 0x20001")
        k.e(f"s_lshl_b32 {sr(s['nt'])}, {sr(s['nt'])}, 3")
        k.e(f"s_lshr_b32 {sr(s['t'])}, s2, 5")
        k.e(f"s_add_u32 {sr(s['nt'])}, {sr(s['nt'])}, {sr(s['t'])}")
    k.e(f"s_cmp_ge_u32 {sr(s['nt'])}, 29")
    k.e(f"s_cbranch_scc1 {skip_to or k.end}")
    k.e(f"s_mul_i32 {sr(s['fb0'])}, {sr(s['nt'])}, 3")
    k.e(f"s_lshl_b32 {sr(s['tile'])}, {sr(s['mt'])}, 3")
    k.e(f"s_add_u32 {sr(s['tile'])}, {sr(s['tile'])}, {sr(k.sw)}")
    k.e(f"s_lshl_b32 {sr(s['hg'])}, {sr(s['tile'])}, 15")
    k.e(f"s_add_u32 {sr(s['hg'])}, {sr(s['hg'])}, {HF}")
    l16 = k.l16
    HB = k.v.alloc("HB", 4 * RING, 4)
    SS = k.v.alloc("SS", 16, 4)
    T = k.v.alloc("T", 12, 4)
    k.vm = []
    lw, nw = k.L("p4_ld"), k.L("p4_now")
    k.e(f"s_cmp_ge_u32 {sr(k.sw)}, 4")
    k.e(f"s_cbranch_scc1 {lw}")
    k.e(f"s_cmp_eq_u32 {sr(k.sw)}, 3")
    k.e(f"s_cbranch_scc1 {nw}")
    k.e(f"s_add_u32 {sr(s['t'])}, {sr(k.sw)}, {sr(s['fb0'])}")
    k.e(f"s_lshl_b32 {sr(s['t'])}, {sr(s['t'])}, 11")
    k.e(f"s_add_u32 {sr(s['t'])}, {sr(s['t'])}, {CSP}")
    for i in range(2):
        k.e(f"buffer_load_dwordx4 {vr(T + 4 * i, 4)}, {vr(l16)}, {ws}, {sr(s['t'])} offen offset:{i * 1024} {ld_flags}")
    k.e("s_waitcnt vmcnt(0)")
    for e in range(4):
        k.e(f"v_add_f32 {vr(T + e)}, {vr(T + e)}, {vr(T + 4 + e)}")
    k.e("s_nop 0")
    for e in range(4):
        k.e(f"v_add_f32_dpp {vr(T + e)}, {vr(T + e)}, {vr(T + e)} row_ror:8 row_mask:0xf bank_mask:0xf")
    for swap in ("v_permlane16_swap_b32", "v_permlane32_swap_b32"):
        for e in range(4):
            k.e(f"v_mov_b32 {vr(T + 4 + e)}, {vr(T + e)}")
        k.e("s_nop 0")
        for e in range(4):
            k.e(f"{swap} {vr(T + e)}, {vr(T + 4 + e)}")
        for e in range(4):
            k.e(f"v_add_f32 {vr(T + e)}, {vr(T + e)}, {vr(T + 4 + e)}")
    k.e(f"s_mul_i32 {sr(s['t'])}, {sr(k.sw)}, {TSTR}")
    k.e(f"s_add_u32 {sr(s['t'])}, {sr(s['t'])}, {LW + 32 * 1024}")
    k.e(f"v_and_b32 {vr(T + 4)}, 7, {vr(k.lane)}")
    k.e(f"v_lshlrev_b32 {vr(T + 4)}, 6, {vr(T + 4)}")
    k.e(f"v_add_u32 {vr(T + 4)}, {sr(s['t'])}, {vr(T + 4)}")
    FR = SS
    k.e(f"v_mov_b32 {vr(FR + 2)}, 0")
    k.e(f"v_mov_b32 {vr(FR + 3)}, 0")
    for e in range(4):
        k.e(f"v_cvt_pk_bf16_f32 {vr(T + 5)}, {vr(T + e)}, {vr(T + e)}")
        k.e(f"v_and_b32 {vr(T + 6)}, 0xffff0000, {vr(T + 5)}")
        k.e(f"v_sub_f32 {vr(T + 6)}, {vr(T + e)}, {vr(T + 6)}")
        k.e(f"v_cvt_pk_bf16_f32 {vr(FR)}, {vr(T + e)}, {vr(T + 6)}")
        k.e(f"v_and_b32 {vr(FR + 1)}, 0xffff, {vr(T + 5)}")
        k.e(f"ds_write_b128 {vr(T + 4)}, {vr(FR, 4)} offset:{e * 16}")
        k.e("s_nop 0")
    k.e(f"v_mov_b32 {vr(FR)}, 0")
    k.e(f"v_mov_b32 {vr(FR + 1)}, 0")
    k.e(f"v_and_b32 {vr(T + 4)}, 31, {vr(k.lane)}")
    k.e(f"v_lshlrev_b32 {vr(T + 4)}, 4, {vr(T + 4)}")
    k.e(f"v_add_u32 {vr(T + 4)}, {sr(s['t'])}, {vr(T + 4)}")
    k.e(f"ds_write_b128 {vr(T + 4)}, {vr(FR, 4)} offset:512")
    k.e(f"s_branch {nw}")
    k.lab(lw)
    k.e(f"s_sub_u32 {sr(s['t'])}, {sr(k.sw)}, 4")
    k.e(f"s_mul_i32 {sr(s['t'])}, {sr(s['t'])}, 24")
    gq, lq = k.s.alloc("p4_gq"), k.s.alloc("p4_lq")
    for i in range(0, 24, 4):
        k.e(f"s_add_u32 {sr(gq)}, {sr(s['t'])}, {i}")
        k.e(f"s_lshr_b32 {sr(lq)}, {sr(gq)}, 5")
        k.e(f"s_add_u32 {sr(lq)}, {sr(lq)}, {sr(gq)}")
        k.e(f"s_lshl_b32 m0, {sr(lq)}, 10")
        k.e(f"s_lshl_b32 {sr(gq)}, {sr(gq)}, 10")
        k.e(f"s_lshl_b32 {sr(lq)}, {sr(s['fb0'])}, 15")
        k.e(f"s_add_u32 {sr(gq)}, {sr(gq)}, {sr(lq)}")
        k.e(f"s_add_u32 {sr(gq)}, {sr(gq)}, {WGUF}")
        for j in range(4):
            k.e(f"buffer_load_dwordx4 {vr(l16)}, {ws}, {sr(gq)} offen offset:{j * 1024} {ld_flags} lds")
    k.lab(nw)
    aW = k.v.alloc("aW", 2)
    k.e(f"v_mov_b32 {vr(aW)}, {vr(l16)}")
    k.e(f"v_add_u32 {vr(aW + 1)}, 65536, {vr(l16)}")
    ACC = [k.v.alloc(f"ACC{t}", 16, 4) for t in range(3)]
    for t in range(3):
        for i in range(16):
            k.e(f"v_mov_b32 {vr(ACC[t] + i)}, 0")
    FW = [k.v.alloc(f"FW{i}", 12, 4) for i in range(3)]
    RS, VE = k.v.alloc("RS"), k.v.alloc("VE")
    MF = k.v.alloc("MF", 4, 4)

    def reads(n):
        out = []
        for t in range(3):
            off = LW + t * TSTR + n * 1024
            out.append(f"ds_read_b128 {vr(FW[n % 3] + 4 * t, 4)}, {vr(aW + (off >> 16))} offset:{off & 65535}")
        return out

    def h_load(n):
        k.e(f"s_add_u32 {sr(s['t2'])}, {sr(s['hg'])}, {(n & ~3) * 1024}")
        k.vmem(f"buffer_load_dwordx4 {vr(HB + 4 * (n % RING), 4)}, {vr(l16)}, {ws}, {sr(s['t2'])} offen offset:{(n % 4) * 1024} {ld_flags}", f"h{n}")

    def stats_load():
        k.e(f"s_lshl_b32 {sr(s['t'])}, {sr(s['tile'])}, 12")
        k.e(f"s_add_u32 {sr(s['t'])}, {sr(s['t'])}, {ST}")
        for g in range(4):
            k.vmem(f"buffer_load_dwordx4 {vr(SS + 4 * g, 4)}, {vr(l16)}, {ws}, {sr(s['t'])} offen offset:{g * 1024} {ld_flags}", "st")

    def stats_reduce():
        k.wait_vm("st")
        for e in range(4):
            k.e(f"v_add_f32 {vr(SS + e)}, {vr(SS + e)}, {vr(SS + 4 + e)}")
            k.e(f"v_add_f32 {vr(SS + 8 + e)}, {vr(SS + 8 + e)}, {vr(SS + 12 + e)}")
        for e in range(4):
            k.e(f"v_add_f32 {vr(SS + e)}, {vr(SS + e)}, {vr(SS + 8 + e)}")
        for swap in ("v_permlane16_swap_b32", "v_permlane32_swap_b32"):
            for e in range(4):
                k.e(f"v_mov_b32 {vr(SS + 4 + e)}, {vr(SS + e)}")
            k.e("s_nop 0")
            for e in range(4):
                k.e(f"{swap} {vr(SS + e)}, {vr(SS + 4 + e)}")
            for e in range(4):
                k.e(f"v_add_f32 {vr(SS + e)}, {vr(SS + e)}, {vr(SS + 4 + e)}")
        k.e(f"s_lshl_b32 {sr(s['t'])}, {sr(k.sw)}, 8")
        k.e(f"s_add_u32 {sr(s['t'])}, {sr(s['t'])}, {LSC}")
        k.e(f"v_and_b32 {vr(T)}, 15, {vr(k.lane)}")
        k.e(f"v_lshlrev_b32 {vr(T)}, 4, {vr(T)}")
        k.e(f"v_add_u32 {vr(T)}, {sr(s['t'])}, {vr(T)}")
        k.e(f"ds_write_b128 {vr(T)}, {vr(SS, 4)}")
        k.e(f"v_and_b32 {vr(T + 1)}, 31, {vr(k.lane)}")
        k.e(f"v_lshlrev_b32 {vr(T + 1)}, 2, {vr(T + 1)}")
        k.e(f"v_add_u32 {vr(T + 1)}, {sr(s['t'])}, {vr(T + 1)}")
        k.e(f"ds_read_b32 {vr(SS + 8)}, {vr(T + 1)}")
        k.e(f"ds_read_b32 {vr(SS + 9)}, {vr(T + 1)} offset:128")

    def stats_finish():
        k.e(f"v_mul_f32 {vr(SS)}, {f32hex(1.0 / D)}, {vr(SS + 8)}")
        k.e(f"v_mul_f32 {vr(VE)}, {f32hex(1.0 / D)}, {vr(SS + 9)}")
        k.e(f"v_fma_f32 {vr(VE)}, -{vr(SS)}, {vr(SS)}, {vr(VE)}")
        k.e(f"v_max_f32 {vr(VE)}, 0, {vr(VE)}")
        k.e(f"v_add_f32 {vr(VE)}, {f32hex(1e-5)}, {vr(VE)}")
        k.e(f"v_rsq_f32 {vr(RS)}, {vr(VE)}")
        k.e(f"v_sub_f32 {vr(SS + 4)}, 0, {vr(SS)}")
        k.e(f"v_cmp_gt_u32 vcc, 32, {vr(k.lane)}")
        split_frag(k, SS + 4, MF, SS + 5, True)
        k.e(f"v_mul_f32 {vr(RS)}, {f32hex(-LOG2E)}, {vr(RS)}")

    if wait:
        wait("poll")
    AH = 7
    for n in range(AH):
        h_load(n)
    n_after = len(k.vm)
    k.e(f"s_waitcnt vmcnt({n_after}) lgkmcnt(0)")
    k.e("s_barrier")
    stamp(k, 1)
    for r_ in reads(0) + reads(1):
        k.e(r_)
    for n in range(NST):
        if n + AH < 32:
            h_load(n + AH)
        if n == 2:
            stats_load()
        if n == 14:
            stats_reduce()
        lg_extra = 0
        if n == 18:
            stats_finish()
        nxt = reads(n + 2) if n + 2 < NST else []
        lg = 3 if n + 1 < NST else 0
        if n == 14:
            lg = 3 + 3
        if n < 32:
            k.wait_vm(f"h{n}", lgkm=(0 if n in (14, 15) else lg))
            B = vr(HB + 4 * (n % RING), 4)
        else:
            k.e("s_waitcnt lgkmcnt(0)")
            B = vr(MF, 4)
        for t in range(3):
            k.e(f"v_mfma_f32_32x32x16_bf16 {vr(ACC[t], 16)}, {vr(FW[n % 3] + 4 * t, 4)}, {B}, {vr(ACC[t], 16)}")
            if t < len(nxt):
                k.e(nxt[t])
    stamp(k, 2)
    k.e(f"s_mul_i32 {sr(s['t'])}, {sr(s['tile'])}, {FBP * 1024}")
    k.e(f"s_lshl_b32 {sr(s['t2'])}, {sr(s['fb0'])}, 10")
    k.e(f"s_add_u32 {sr(s['t'])}, {sr(s['t'])}, {sr(s['t2'])}")
    k.e(f"s_add_u32 {sr(s['t'])}, {sr(s['t'])}, {ACT}")
    k.e("s_nop 5")
    E = HB
    for t in range(3):
        A = ACC[t]
        e = E + 12 * t
        for j in range(8):
            k.e(f"v_mul_f32 {vr(e + j)}, {vr(A + j)}, {vr(RS)}")
        for j in range(8):
            k.e(f"v_exp_f32 {vr(e + j)}, {vr(e + j)}")
        for j in range(8):
            k.e(f"v_mul_f32 {vr(A + j)}, {vr(A + j)}, {vr(A + 8 + j)}")
        for j in range(8):
            k.e(f"v_fma_f32 {vr(e + j)}, {vr(e + j)}, {vr(VE)}, {vr(VE)}")
        for j in range(8):
            k.e(f"v_rcp_f32 {vr(e + j)}, {vr(e + j)}")
        k.e("s_nop 0")
        for j in range(8):
            k.e(f"v_mul_f32 {vr(A + j)}, {vr(A + j)}, {vr(e + j)}")
        for j in range(4):
            k.e(f"v_cvt_pk_bf16_f32 {vr(e + 8 + j)}, {vr(A + 2 * j)}, {vr(A + 2 * j + 1)}")
        k.e(f"buffer_store_dwordx4 {vr(e + 8, 4)}, {vr(l16)}, {ws}, {sr(s['t'])} offen offset:{t * 1024} {st_flags}")
    stamp(k, 3)
```

```python
from common import *


def side_params(k, s, unit_wave0):
    skip = k.L("noside")
    k.e(f"s_mov_b32 {sr(s['type'])}, 0")
    k.e(f"s_sub_u32 {sr(s['u'])}, {sr(k.sw)}, {unit_wave0}")
    k.e(f"s_cmp_ge_u32 {sr(s['u'])}, 3")
    k.e(f"s_cbranch_scc1 {skip}")
    k.e(f"s_lshl_b32 {sr(s['lds'])}, {sr(s['u'])}, 13")
    k.e(f"s_add_u32 {sr(s['lds'])}, {sr(s['lds'])}, {s['LSIDE']}")
    k.e(f"s_lshl_b32 {sr(s['u'])}, {sr(s['u'])}, 8")
    k.e(f"s_add_u32 {sr(s['u'])}, {sr(s['u'])}, s2")
    k.e(f"s_cmp_ge_u32 {sr(s['u'])}, 592")
    k.e(f"s_cbranch_scc1 {skip}")
    l_wd, l_gu = k.L("unit_wd"), k.L("unit_gu")
    k.e(f"s_cmp_ge_u32 {sr(s['u'])}, 240")
    k.e(f"s_cbranch_scc1 {l_gu}")
    k.e(f"s_cmp_ge_u32 {sr(s['u'])}, 64")
    k.e(f"s_cbranch_scc1 {l_wd}")
    for typ, sub, tstr, base, nxt in ((1, 0, 32 * 1024, WOF, l_wd), (2, 64, FBP * 1024, WDF, l_gu)):
        k.e(f"s_mov_b32 {sr(s['type'])}, {typ}")
        if sub:
            k.e(f"s_sub_u32 {sr(s['u'])}, {sr(s['u'])}, {sub}")
        k.e(f"s_and_b32 {sr(s['cb'])}, {sr(s['u'])}, 7")
        k.e(f"s_lshr_b32 {sr(s['kb'])}, {sr(s['u'])}, 3")
        k.e(f"s_lshl_b32 {sr(s['src'])}, {sr(s['kb'])}, 16")
        k.e(f"s_lshl_b32 {sr(s['t'])}, {sr(s['cb'])}, 7")
        k.e(f"s_add_u32 {sr(s['src'])}, {sr(s['src'])}, {sr(s['t'])}")
        k.e(f"s_mul_i32 {sr(s['dst'])}, {sr(s['cb'])}, {2 * tstr}")
        k.e(f"s_lshl_b32 {sr(s['t'])}, {sr(s['kb'])}, 12")
        k.e(f"s_add_u32 {sr(s['dst'])}, {sr(s['dst'])}, {sr(s['t'])}")
        k.e(f"s_add_u32 {sr(s['dst'])}, {sr(s['dst'])}, {base}")
        k.e(f"s_mov_b32 {sr(s['dstride'])}, {tstr}")
        k.e(f"s_branch {skip}")
        k.lab(nxt)
    k.e(f"s_mov_b32 {sr(s['type'])}, 3")
    k.e(f"s_sub_u32 {sr(s['u'])}, {sr(s['u'])}, 240")
    k.e(f"s_and_b32 {sr(s['kb'])}, {sr(s['u'])}, 15")
    k.e(f"s_lshr_b32 {sr(s['cb'])}, {sr(s['u'])}, 4")
    k.e(f"s_mul_i32 {sr(s['src'])}, {sr(s['kb'])}, {32 * 2 * F}")
    k.e(f"s_lshl_b32 {sr(s['t'])}, {sr(s['cb'])}, 7")
    k.e(f"s_add_u32 {sr(s['src'])}, {sr(s['src'])}, {sr(s['t'])}")
    k.e(f"s_mul_i32 {sr(s['dst'])}, {sr(s['cb'])}, {4 * 32 * 1024}")
    k.e(f"s_lshl_b32 {sr(s['t'])}, {sr(s['kb'])}, 11")
    k.e(f"s_add_u32 {sr(s['dst'])}, {sr(s['dst'])}, {sr(s['t'])}")
    k.e(f"s_add_u32 {sr(s['dst'])}, {sr(s['dst'])}, {WGUF}")
    k.lab(skip)


def side_issue(k, s, tmp):
    done, l_gu, l_wd = k.L("sidei_done"), k.L("sidei_gu"), k.L("sidei_wd")
    k.e(f"s_cmp_eq_u32 {sr(s['type'])}, 0")
    k.e(f"s_cbranch_scc1 {done}")
    a, b = tmp, tmp + 1
    k.e(f"v_lshrrev_b32 {vr(a)}, 4, {vr(k.lane)}")
    k.e(f"v_and_b32 {vr(a)}, 1, {vr(a)}")
    k.e(f"v_lshlrev_b32 {vr(a)}, 2, {vr(a)}")
    k.e(f"v_and_b32 {vr(b)}, 7, {vr(k.lane)}")
    k.e(f"v_xor_b32 {vr(a)}, {vr(a)}, {vr(b)}")
    k.e(f"v_lshlrev_b32 {vr(a)}, 4, {vr(a)}")
    k.e(f"v_lshrrev_b32 {vr(b)}, 3, {vr(k.lane)}")
    k.e(f"s_cmp_eq_u32 {sr(s['type'])}, 3")
    k.e(f"s_cbranch_scc1 {l_gu}")
    k.e(f"v_lshlrev_b32 {vr(b)}, 10, {vr(b)}")
    k.e(f"v_add_u32 {vr(a)}, {vr(a)}, {vr(b)}")
    k.e(f"s_cmp_eq_u32 {sr(s['type'])}, 2")
    k.e(f"s_cbranch_scc1 {l_wd}")
    for srd in ("wo", "wd"):
        if srd == "wd":
            k.lab(l_wd)
        for i in range(8):
            k.e(f"s_add_u32 m0, {sr(s['lds'])}, {i * 1024}")
            k.e(f"s_add_u32 {sr(s['t'])}, {sr(s['src'])}, {i * 8 * 1024}")
            k.e(f"buffer_load_dwordx4 {vr(a)}, {k.srd[srd]}, {sr(s['t'])} offen lds")
        k.e(f"s_branch {done}")
    k.lab(l_gu)
    k.e(f"v_mul_u32_u24 {vr(b)}, {2 * F}, {vr(b)}")
    k.e(f"v_add_u32 {vr(a)}, {vr(a)}, {vr(b)}")
    for i in range(8):
        k.e(f"s_add_u32 m0, {sr(s['lds'])}, {i * 1024}")
        k.e(f"s_add_u32 {sr(s['t'])}, {sr(s['src'])}, {(i & 3) * 8 * 2 * F}")
        k.e(f"buffer_load_dwordx4 {vr(a)}, {k.srd['wg' if i < 4 else 'wu']}, {sr(s['t'])} offen lds")
    k.lab(done)


def side_finish(k, s, tmp, after=None):
    done, l_gu = k.L("sidef_done"), k.L("sidef_gu")
    k.e(f"s_cmp_eq_u32 {sr(s['type'])}, 0")
    k.e(f"s_cbranch_scc1 {done}")
    ad, t0, t1, data = tmp, tmp + 4, tmp + 5, tmp + 8
    lane16 = k.l16
    ws = k.srd["ws"]
    k.e(f"v_lshrrev_b32 {vr(t0)}, 5, {vr(k.lane)}")
    k.e(f"v_lshlrev_b32 {vr(t0)}, 9, {vr(t0)}")
    k.e(f"v_bfe_u32 {vr(t1)}, {vr(k.lane)}, 2, 2")
    k.e(f"v_lshlrev_b32 {vr(t1)}, 7, {vr(t1)}")
    k.e(f"v_add_u32 {vr(t0)}, {vr(t0)}, {vr(t1)}")
    k.e(f"v_and_b32 {vr(t1)}, 3, {vr(k.lane)}")
    k.e(f"v_lshlrev_b32 {vr(t1)}, 3, {vr(t1)}")
    k.e(f"v_add_u32 {vr(t0)}, {vr(t0)}, {vr(t1)}")
    k.e(f"v_add_u32 {vr(t0)}, {sr(s['lds'])}, {vr(t0)}")
    k.e(f"v_bfe_u32 {vr(t1)}, {vr(k.lane)}, 3, 1")
    k.e(f"v_lshlrev_b32 {vr(t1)}, 1, {vr(t1)}")
    k.e(f"s_cmp_eq_u32 {sr(s['type'])}, 3")
    k.e(f"s_cbranch_scc1 {l_gu}")
    for tile in range(2):
        k.e(f"v_bfe_u32 {vr(ad + tile)}, {vr(k.lane)}, 4, 1")
        k.e(f"v_or_b32 {vr(ad + tile)}, {2 * tile}, {vr(ad + tile)}")
        k.e(f"v_xor_b32 {vr(ad + tile)}, {vr(ad + tile)}, {vr(t1)}")
        k.e(f"v_lshlrev_b32 {vr(ad + tile)}, 5, {vr(ad + tile)}")
        k.e(f"v_add_u32 {vr(ad + tile)}, {vr(ad + tile)}, {vr(t0)}")
    for tile in range(2):
        for ks in range(4):
            for t in range(2):
                d = data + 4 * (4 * tile + ks) + 2 * t
                k.e(f"ds_read_b64_tr_b16 {vr(d, 2)}, {vr(ad + tile)} offset:{(2 * ks + t) * 1024}")
    for tile in range(2):
        k.e(f"s_mul_i32 {sr(s['t'])}, {sr(s['dstride'])}, {tile}")
        k.e(f"s_add_u32 {sr(s['t'])}, {sr(s['t'])}, {sr(s['dst'])}")
        for ks in range(4):
            k.e(f"s_waitcnt lgkmcnt({2 * (7 - (4 * tile + ks))})")
            k.e(f"buffer_store_dwordx4 {vr(data + 4 * (4 * tile + ks), 4)}, {vr(lane16)}, {ws}, {sr(s['t'])} offen offset:{ks * 1024} {SC}")
    k.e(f"s_branch {done}")
    k.lab(l_gu)
    k.e(f"v_bfe_u32 {vr(ad)}, {vr(k.lane)}, 4, 1")
    k.e(f"v_lshlrev_b32 {vr(ad)}, 12, {vr(ad)}")
    k.e(f"v_add_u32 {vr(t0)}, {vr(t0)}, {vr(ad)}")
    for fbl in range(4):
        k.e(f"v_xor_b32 {vr(ad + fbl)}, {fbl}, {vr(t1)}")
        k.e(f"v_lshlrev_b32 {vr(ad + fbl)}, 5, {vr(ad + fbl)}")
        k.e(f"v_add_u32 {vr(ad + fbl)}, {vr(ad + fbl)}, {vr(t0)}")
    for fbl in range(4):
        for ks in range(2):
            for t in range(2):
                d = data + 4 * (2 * fbl + ks) + 2 * t
                k.e(f"ds_read_b64_tr_b16 {vr(d, 2)}, {vr(ad + fbl)} offset:{(2 * ks + t) * 1024}")
    for fbl in range(4):
        k.e(f"s_add_u32 {sr(s['t'])}, {sr(s['dst'])}, {fbl * 32 * 1024}")
        for ks in range(2):
            k.e(f"s_waitcnt lgkmcnt({2 * (7 - (2 * fbl + ks))})")
            k.e(f"buffer_store_dwordx4 {vr(data + 4 * (2 * fbl + ks), 4)}, {vr(lane16)}, {ws}, {sr(s['t'])} offen offset:{ks * 1024} {SC}")
    ones = ad
    k.e(f"v_mov_b32 {vr(ones)}, 0x3f803f80")
    k.e(f"s_lshl_b32 {sr(s['t'])}, {sr(s['cb'])}, 13")
    k.e(f"s_lshl_b32 {sr(s['t2'])}, {sr(s['kb'])}, 7")
    k.e(f"s_add_u32 {sr(s['t'])}, {sr(s['t'])}, {sr(s['t2'])}")
    k.e(f"s_add_u32 {sr(s['t'])}, {sr(s['t'])}, {CSP}")
    k.e(f"v_and_b32 {vr(ad + 1)}, 31, {vr(k.lane)}")
    k.e(f"v_lshlrev_b32 {vr(ad + 1)}, 2, {vr(ad + 1)}")
    acc = [t0, t1, ad + 2, ad + 3]
    for d in range(8):
        for fbl in range(4):
            k.e(f"v_dot2_f32_bf16 {vr(acc[fbl])}, {vr(data + 8 * fbl + d)}, {vr(ones)}, {vr(acc[fbl]) if d else 0}")
    k.e("s_nop 2")
    for fbl in range(4):
        half_sum(k, acc[fbl], tmp + 6, tmp + 7)
    for fbl in range(4):
        k.e(f"s_add_u32 {sr(s['t2'])}, {sr(s['t'])}, {fbl * 2048}")
        k.e(f"buffer_store_dword {vr(acc[fbl])}, {vr(ad + 1)}, {ws}, {sr(s['t2'])} offen {SC}")
    k.lab(done)
    if after:
        after()


def side_regs(k, lside):
    s = {n: k.s.alloc("side_" + n) for n in ("type", "u", "cb", "kb", "src", "dst", "dstride", "lds", "t", "t2")}
    s["LSIDE"] = lside
    return s
```

```python
from common import *
import emit, p1, p2, p35, p4

LDS_ALL = 163840
FS = FLAGS + 4096
SPIN_MAX = 1 << 20


def flag_line(phase):
    return FLAGS + (phase - 1) * 1024


def build(stamps=False, name="sequential_preLN__softmax_full_mha__swiglu_ffn__prompt_kernel", prefetch=True, sel=None):
    k = Kernel(name, 512, LDS_ALL)
    k.stamps, k.stamp_slot, k.nstamps = stamps, 0, 13
    k.phase = 0
    k.stamp_sel = sel or {(1, 3): 1, (10, 1): 2, (2, 1): 3, (2, 2): 4, (10, 2): 5, (3, 1): 6, (10, 3): 7, (4, 1): 8, (4, 2): 9,
                          (10, 4): 10, (5, 1): 11, (5, 2): 12, (5, 3): 13}
    entry(k, [p[0] for p in ALL_PTRS])
    ws = k.srd["ws"]
    G = k.s.alloc("G")
    sa, sb, cnt = k.s.alloc("sy_a"), k.s.alloc("sy_b"), k.s.alloc("sy_cnt")
    k.e(f"s_and_b32 {sr(G)}, s2, 7")
    k.e(f"s_lshl_b32 {sr(G)}, {sr(G)}, 7")
    KH = k.v.alloc("keep_h", 8, 4)
    pv = k.v.alloc("sy_v", 4, 4)

    def own_flag_offset(phase, dst):
        if phase == 1:
            k.e(f"s_and_b32 {sr(dst)}, s2, 1")
            k.e(f"s_lshl_b32 {sr(dst)}, {sr(dst)}, 2")
            k.e(f"s_lshr_b32 {sr(cnt)}, s2, 6")
            k.e(f"s_add_u32 {sr(dst)}, {sr(dst)}, {sr(cnt)}")
            k.e(f"s_lshl_b32 {sr(dst)}, {sr(dst)}, 5")
            k.e(f"s_bfe_u32 {sr(cnt)}, s2, 0x20001")
            k.e(f"s_lshl_b32 {sr(cnt)}, {sr(cnt)}, 3")
            k.e(f"s_add_u32 {sr(dst)}, {sr(dst)}, {sr(cnt)}")
            k.e(f"s_bfe_u32 {sr(cnt)}, s2, 0x30003")
            k.e(f"s_add_u32 {sr(dst)}, {sr(dst)}, {sr(cnt)}")
            k.e(f"s_lshl_b32 {sr(dst)}, {sr(dst)}, 2")
        elif phase == 2:
            k.e(f"s_lshr_b32 {sr(dst)}, s2, 5")
            k.e(f"s_lshl_b32 {sr(dst)}, {sr(dst)}, 5")
            k.e(f"s_and_b32 {sr(cnt)}, s2, 7")
            k.e(f"s_lshl_b32 {sr(cnt)}, {sr(cnt)}, 2")
            k.e(f"s_add_u32 {sr(dst)}, {sr(dst)}, {sr(cnt)}")
            k.e(f"s_bfe_u32 {sr(cnt)}, s2, 0x20003")
            k.e(f"s_add_u32 {sr(dst)}, {sr(dst)}, {sr(cnt)}")
            k.e(f"s_lshl_b32 {sr(dst)}, {sr(dst)}, 2")
        else:
            k.e(f"s_lshr_b32 {sr(dst)}, s2, 3")
            k.e(f"s_lshl_b32 {sr(dst)}, {sr(dst)}, 2")
            k.e(f"s_add_u32 {sr(dst)}, {sr(dst)}, {sr(G)}")
        k.e(f"s_add_u32 {sr(dst)}, {sr(dst)}, {flag_line(phase)}")

    def one_lane_store(off_reg, val):
        k.e(f"v_mov_b32 {vr(pv)}, {val}")
        k.e(f"v_mov_b32 {vr(pv + 1)}, 0")
        k.e("s_mov_b64 exec, 1")
        k.e(f"buffer_store_dword {vr(pv)}, {vr(pv + 1)}, {ws}, {sr(off_reg)} offen {SC}")
        k.e("s_mov_b64 exec, -1")

    def clear_flags():
        skip = k.L("noclr")
        k.e(f"s_cmp_lg_u32 {sr(k.sw)}, 3")
        k.e(f"s_cbranch_scc1 {skip}")
        for ph in range(1, 5):
            own_flag_offset(ph, sa)
            one_lane_store(sa, 0)
        for i in range(3):
            k.e(f"s_lshl_b32 {sr(sa)}, s2, 2")
            k.e(f"s_add_u32 {sr(sa)}, {sr(sa)}, {FS + i * 1024}")
            one_lane_store(sa, 0)
        k.lab(skip)

    def count_arrival():
        skip = k.L("nocnt")
        k.e(f"s_cmp_lg_u32 {sr(k.sw)}, 3")
        k.e(f"s_cbranch_scc1 {skip}")
        k.e(f"s_and_b32 {sr(sa)}, s2, 63")
        k.e(f"s_lshl_b32 {sr(sa)}, {sr(sa)}, 2")
        k.e(f"v_mov_b32 {vr(pv)}, 1")
        k.e(f"v_mov_b32 {vr(pv + 1)}, 0")
        k.e("s_mov_b64 exec, 1")
        k.e(f"buffer_atomic_add {vr(pv)}, {vr(pv + 1)}, {k.srd['dbg']}, {sr(sa)} offen sc1")
        k.e("s_mov_b64 exec, -1")
        k.lab(skip)

    def spin(srd, addr_v, soff, want, ndw=1):
        loop, out = k.L("spin"), k.L("spin_out")
        k.e(f"s_mov_b32 {sr(cnt)}, 0")
        k.lab(loop)
        k.e(f"s_add_u32 {sr(cnt)}, {sr(cnt)}, 1")
        k.e(f"s_cmp_gt_u32 {sr(cnt)}, {SPIN_MAX}")
        k.e(f"s_cbranch_scc1 {out}")
        k.e(f"buffer_load_dword {vr(pv)}, {vr(addr_v)}, {srd}, {soff} offen {SC}")
        k.e("s_waitcnt vmcnt(0)")
        k.e(f"v_cmp_ne_u32 vcc, {want}, {vr(pv)}")
        k.e(f"s_cbranch_vccnz {loop}")
        k.lab(out)

    def publish(phase, skip_if_idle=None):
        k.e("s_waitcnt vmcnt(0)")
        k.e("s_barrier")
        skip = k.L("nopub")
        k.e(f"s_cmp_lg_u32 {sr(k.sw)}, 0")
        k.e(f"s_cbranch_scc1 {skip}")
        own_flag_offset(phase, sa)
        one_lane_store(sa, 1)
        k.lab(skip)

    def poll(phase, first=False):
        if first:
            k.e(f"v_lshlrev_b32 {vr(pv + 1)}, 2, {vr(k.lane)}")
            spin(k.srd["dbg"], pv + 1, 0, 4)
        k.e(f"v_and_b32 {vr(pv + 1)}, 31, {vr(k.lane)}")
        if phase == 4:
            k.e(f"v_min_u32 {vr(pv + 1)}, 28, {vr(pv + 1)}")
        k.e(f"v_lshlrev_b32 {vr(pv + 1)}, 2, {vr(pv + 1)}")
        k.e(f"s_add_u32 {sr(sb)}, {sr(G)}, {flag_line(phase)}")
        spin(ws, pv + 1, sr(sb), 1)

    def waiter(phase, first=False):
        def w(role="poll"):
            if role == "poll":
                skip = k.L("nopoll")
                k.e(f"s_cmp_lg_u32 {sr(k.sw)}, 0")
                k.e(f"s_cbranch_scc1 {skip}")
                poll(phase, first)
                k.lab(skip)
            k.e("s_barrier")
        return w

    with Scope(k):
        k.phase = 1
        p1.phase1(k, with_side=False, before_x=clear_flags, after_x=count_arrival)
    publish(1)
    gs(k, 1)

    def side_done(tmp):
        skip = k.L("nosd")
        k.e(f"s_cmp_ge_u32 {sr(k.sw)}, 3")
        k.e(f"s_cbranch_scc1 {skip}")
        k.e("s_waitcnt vmcnt(0)")
        k.e(f"s_lshl_b32 {sr(sa)}, {sr(k.sw)}, 10")
        k.e(f"s_lshl_b32 {sr(sb)}, s2, 2")
        k.e(f"s_add_u32 {sr(sa)}, {sr(sa)}, {sr(sb)}")
        k.e(f"s_add_u32 {sr(sa)}, {sr(sa)}, {FS}")
        one_lane_store(sa, 1)
        k.lab(skip)

    def late(i, tmp):
        F = tmp + 20
        if i == 30:
            k.e(f"s_mov_b32 {sr(sa)}, {FS}")
            for q in range(3):
                k.e(f"buffer_load_dwordx4 {vr(F + 4 * q, 4)}, {vr(k.l16)}, {ws}, {sr(sa)} offen offset:{q * 1024} {SC}")
        if i == 38:
            ok, loop = k.L("fs_ok"), k.L("fs_loop")
            k.e(f"s_mov_b32 {sr(cnt)}, 0")
            k.lab(loop)
            k.e("s_waitcnt vmcnt(0)")
            for q in range(1, 12):
                k.e(f"v_and_b32 {vr(F)}, {vr(F)}, {vr(F + q)}")
            k.e(f"v_cmp_ne_u32 vcc, 1, {vr(F)}")
            k.e(f"s_add_u32 {sr(cnt)}, {sr(cnt)}, 1")
            k.e(f"s_cmp_gt_u32 {sr(cnt)}, {SPIN_MAX}")
            k.e(f"s_cbranch_scc1 {ok}")
            k.e(f"s_cbranch_vccz {ok}")
            k.e(f"s_mov_b32 {sr(sa)}, {FS}")
            for q in range(3):
                k.e(f"buffer_load_dwordx4 {vr(F + 4 * q, 4)}, {vr(k.l16)}, {ws}, {sr(sa)} offen offset:{q * 1024} {SC}")
            k.e(f"s_branch {loop}")
            k.lab(ok)
        if prefetch and i == 40:
            k.e(f"s_lshr_b32 {sr(sa)}, s2, 3")
            k.e(f"s_lshl_b32 {sr(sa)}, {sr(sa)}, 3")
            k.e(f"s_add_u32 {sr(sa)}, {sr(sa)}, {sr(k.sw)}")
            k.e(f"s_mul_i32 {sr(sb)}, {sr(sa)}, {88 * 128}")
            k.e(f"s_add_u32 {sr(sb)}, {sr(sb)}, {WGUF}")
            k.e(f"v_lshlrev_b32 {vr(F)}, 7, {vr(k.lane)}")
            k.e(f"buffer_load_dword {vr(F + 1)}, {vr(F)}, {ws}, {sr(sb)} offen")
            k.e(f"s_add_u32 {sr(sb)}, {sr(sb)}, {64 * 128}")
            k.e(f"v_add_u32 {vr(F + 2)}, {sr(sb)}, {vr(F)}")
            k.e(f"s_lshl_b32 {sr(sb)}, {sr(sa)}, 11")
            k.e(f"s_add_u32 {sr(sb)}, {sr(sb)}, {WOF - 24 * 128}")
            k.e(f"v_add_u32 {vr(F + 3)}, {sr(sb)}, {vr(F)}")
            k.e(f"v_cmp_gt_u32 vcc, 24, {vr(k.lane)}")
            k.e(f"s_mul_i32 {sr(sb)}, {sr(sa)}, {6 * 128}")
            k.e(f"s_add_u32 {sr(sb)}, {sr(sb)}, {CSP - 40 * 128}")
            k.e(f"v_cndmask_b32 {vr(F + 3)}, {vr(F + 3)}, {vr(F + 2)}, vcc")
            k.e(f"v_add_u32 {vr(F + 2)}, {sr(sb)}, {vr(F)}")
            k.e(f"v_cmp_gt_u32 vcc, 40, {vr(k.lane)}")
            k.e("s_nop 1")
            k.e(f"v_cndmask_b32 {vr(F + 3)}, {vr(F + 2)}, {vr(F + 3)}, vcc")
            k.e(f"buffer_load_dword {vr(F + 4)}, {vr(F + 3)}, {ws}, 0 offen")

    with Scope(k):
        k.phase = 2
        p2.phase2(k, pre=waiter(1, first=True), late=late, side_done=side_done)
    publish(2)
    gs(k, 2)
    with Scope(k):
        k.phase = 3
        p35.phase3(k, wait=waiter(2), keep_h=KH)
    publish(3)
    gs(k, 3)
    idle = k.L("p4_idle")
    with Scope(k):
        k.phase = 4
        p4.phase4(k, wait=waiter(3), skip_to=idle)
    publish(4)
    k.lab(idle)
    gs(k, 4)
    with Scope(k):
        k.phase = 5
        p35.phase5(k, wait=waiter(4), keep_h=KH)
    gs(k, 5)
    finish(k)
    return k


def gs(k, i):
    ph, k.phase = k.phase, 10
    stamp(k, i)
    k.phase = ph


HEADER = """; Pre-LN transformer block (softmax MHA with 32 heads x 16, SwiGLU FFN), S=2048, D=512, F=1376, bf16.
"""


def write(path, k):
    from asmlib import check_hazards
    txt = k.text()
    bad = check_hazards(txt, k.name)
    for b in bad:
        print("HAZARD", b)
    out = HEADER + f"; @launch grid=({k.grid},1,1) block=({k.block},1,1) lds={k.lds}\n"
    out += '.amdgcn_target "amdgcn-amd-amdhsa--gfx950"\n.text\n' + txt + '.section .rodata,"a"\n.p2align 6\n' + k.descriptor()
    open(path, "w").write(out)
    return not bad


if __name__ == "__main__":
    k = build(True)
    print(write("ps_s.s", k), k.v.top, k.s.top)
    k = build(False)
    print(write("ps.s", k), k.v.top, k.s.top)
```
